```python
import torch

def _softmax(x, axis=-1):
    return torch.softmax(x, dim=axis)

def _gelu(x):
    return torch.nn.functional.gelu(x, approximate='tanh')

def _silu(x):
    return torch.nn.functional.silu(x)

def _sigmoid(x):
    return torch.sigmoid(x)

def _layernorm(x, axis=-1, eps=1e-05):
    m = x.mean(dim=axis, keepdim=True)
    v = x.var(dim=axis, keepdim=True, unbiased=False)
    return (x - m) / torch.sqrt(v + eps)

def _scatter_add(tgt, idx, src, axis=0):
    return tgt.clone().index_add_(axis, idx, src)

def _segment_sum(src, seg, n):
    out = torch.zeros((n,) + src.shape[1:], dtype=src.dtype)
    return out.index_add_(0, seg, src)

def _pad(x, pw):
    flat = tuple((v for pair in reversed(pw) for v in pair))
    return torch.nn.functional.pad(x, flat)
kernel_name = 'sequential_preLN__memory_aug_recurrent_mem_tr__glu_gated_bilinear__prompt'

def setup_inputs():

    _w = lambda a: (lambda t: t.to(torch.bfloat16) if t.is_floating_point() else t)(torch.as_tensor(a))

    def _A_setup():
        B, S, Dm = (1, 2048, 576)
        H, Dh = (32, 128)
        M, seg = (8, 32)
        seg = min(seg, S)
        S = S // seg * seg
        return {'x': _w((lambda *s: torch.randn(*s, dtype=torch.bfloat16) * 0.05)(B, S, Dm)), 'mem0': _w((lambda *s: torch.randn(*s, dtype=torch.bfloat16) * 0.2)(B, M, Dm)), 'Wq': _w((lambda *s: torch.randn(*s, dtype=torch.bfloat16) * 1.6)(Dm, H, Dh) * Dm ** (-0.5)), 'Wk': _w((lambda *s: torch.randn(*s, dtype=torch.bfloat16) * 1.6)(Dm, H, Dh) * Dm ** (-0.5)), 'Wv': _w((lambda *s: torch.randn(*s, dtype=torch.bfloat16) * 0.2)(Dm, H, Dh) * Dm ** (-0.5)), 'Wo': _w((lambda *s: torch.randn(*s, dtype=torch.bfloat16) * 0.2)(H, Dh, Dm) * (H * Dh) ** (-0.5)), 'seg_len': seg}
    _A_in = _A_setup()

    def _B_setup():
        B, S, D, F = (1, 2048, 576, 4608)
        return {'x': _w((lambda *s: torch.randn(*s, dtype=torch.bfloat16) * 0.05)(B, S, D)), 'w_gate': _w((lambda *s: torch.randn(*s, dtype=torch.bfloat16) * 0.2)(D, F) * D ** (-0.5)), 'w_up': _w((lambda *s: torch.randn(*s, dtype=torch.bfloat16) * 0.2)(D, F) * D ** (-0.5)), 'w_down': _w((lambda *s: torch.randn(*s, dtype=torch.bfloat16) * 0.2)(F, D) * F ** (-0.5))}
    _B_in = _B_setup()
    return {'A_x': _A_in['x'], 'A_mem0': _A_in['mem0'], 'A_Wq': _A_in['Wq'], 'A_Wk': _A_in['Wk'], 'A_Wv': _A_in['Wv'], 'A_Wo': _A_in['Wo'], 'A_seg_len': _A_in['seg_len'], 'B_x': _B_in['x'], 'B_w_gate': _B_in['w_gate'], 'B_w_up': _B_in['w_up'], 'B_w_down': _B_in['w_down']}

def reference(A_x, A_mem0, A_Wq, A_Wk, A_Wv, A_Wo, A_seg_len, B_x, B_w_gate, B_w_up, B_w_down):

    def _A_ref(x, mem0, Wq, Wk, Wv, Wo, seg_len):
        B, S, Dm = x.shape
        H, Dh = (Wq.shape[1], Wq.shape[2])
        M = mem0.shape[1]
        scale = Dh ** (-0.5)
        n_seg = S // seg_len
        L = M + seg_len
        idx = torch.arange(L)
        mask = (idx[:, None] < M) | (idx[:, None] >= idx[None, :])
        mem = mem0
        outs = []
        for s in range(n_seg):
            xs = x[:, s * seg_len:(s + 1) * seg_len, :].clone()
            h = torch.concatenate([mem, xs], axis=1)
            q = torch.einsum('btd,dhe->bhte', h, Wq)
            k = torch.einsum('btd,dhe->bhte', h, Wk)
            v = torch.einsum('btd,dhe->bhte', h, Wv)
            scores = torch.einsum('bhqe,bhke->bhqk', q, k) * scale
            scores = torch.where(mask[None, None], scores, -1000000000.0)
            p = _softmax(scores, axis=-1)
            o = torch.einsum('bhqk,bhke->bhqe', p, v)
            o = torch.einsum('bhte,hed->btd', o, Wo)
            mem = o[:, :M, :].clone()
            outs.append(o[:, M:, :])
        return torch.concatenate(outs, axis=1)

    def _B_ref(x, w_gate, w_up, w_down):
        g = torch.einsum('bsd,df->bsf', x, w_gate)
        u = torch.einsum('bsd,df->bsf', x, w_up)
        h = g * u
        return torch.einsum('bsf,fd->bsd', h, w_down)
    x = A_x
    h = x + _A_ref(_layernorm(x, axis=-1), A_mem0, A_Wq, A_Wk, A_Wv, A_Wo, A_seg_len)
    h2 = h + _B_ref(_layernorm(h, axis=-1), B_w_gate, B_w_up, B_w_down)
    return h2
```

```python
import re

REG_RE = re.compile(r'^(v|a|s)(\d+)$')
RNG_RE = re.compile(r'^(v|a|s)\[(\d+):(\d+)\]$')
TRANS = ('v_exp_f32', 'v_log_f32', 'v_rcp_f32', 'v_rsq_f32', 'v_sqrt_f32', 'v_sin_f32', 'v_cos_f32')


def parse_reg(tok):
    tok = tok.strip()
    if tok.startswith('-') or tok.startswith('|'):
        tok = tok.strip('-|')
    m = REG_RE.match(tok)
    if m:
        k, n = m.group(1), int(m.group(2))
        return [('v', n + 256)] if k == 'a' else [(k, n)]
    m = RNG_RE.match(tok)
    if m:
        k, lo, hi = m.group(1), int(m.group(2)), int(m.group(3))
        off = 256 if k == 'a' else 0
        kk = 'v' if k == 'a' else k
        return [(kk, i + off) for i in range(lo, hi + 1)]
    if tok == 'vcc':
        return [('s', 106), ('s', 107)]
    if tok == 'vcc_lo':
        return [('s', 106)]
    if tok == 'vcc_hi':
        return [('s', 107)]
    if tok == 'exec':
        return [('x', 0)]
    if tok == 'm0':
        return [('m', 0)]
    return []


class Ins:
    __slots__ = ('text', 'op', 'ops', 'mods', 'kind', 'rd', 'wr', 'passes', 'srcC', 'srcAB', 'dpp', 'tag',
                 'wide_store', 'lds_dma', 'target')

    def __init__(self, text, tag=None):
        self.text = text
        self.tag = tag
        t = text.split(';')[0].strip()
        parts = t.split(None, 1)
        self.op = parts[0]
        rest = parts[1] if len(parts) > 1 else ''
        ops, depth, cur = [], 0, ''
        for ch in rest:
            if ch in '[(':
                depth += 1
            if ch in '])':
                depth -= 1
            if ch == ',' and depth == 0:
                ops.append(cur.strip())
                cur = ''
            else:
                cur += ch
        if cur.strip():
            ops.append(cur.strip())
        self.mods = ''
        if ops:
            last = ops[-1].split(None, 1)
            ops[-1] = last[0]
            if len(last) > 1:
                self.mods = last[1]
        self.ops = ops
        self.rd, self.wr = set(), set()
        self.passes = 0
        self.srcC, self.srcAB = set(), set()
        self.dpp = False
        self.wide_store = set()
        self.lds_dma = False
        self.target = None
        self.classify()

    def classify(self):
        op, ops = self.op, self.ops
        R = parse_reg
        if op.startswith('v_mfma') or op.startswith('v_smfmac'):
            self.kind = 'xdl'
            self.passes = 8 if '32x32' in op else 4
            self.wr = set(R(ops[0]))
            self.srcAB = set(R(ops[1])) | set(R(ops[2]))
            if op.startswith('v_smfmac'):
                self.srcAB |= set(R(ops[3]))
                self.srcC = set(R(ops[0]))
            else:
                self.srcC = set(R(ops[3]))
            self.rd = self.srcAB | self.srcC
        elif op.startswith('v_'):
            self.kind = 'valu'
            if op.startswith('v_nop'):
                return
            self.dpp = '_dpp' in op or 'quad_perm' in self.mods or 'row_' in self.mods
            if 'swap' in op:
                self.wr = set(R(ops[0])) | set(R(ops[1]))
                self.rd = set(self.wr)
                return
            self.wr = set(R(ops[0]))
            srcs = ops[1:]
            if op.startswith(('v_add_co', 'v_sub_co', 'v_addc_co', 'v_subb_co', 'v_div_scale', 'v_mad_u64_u32')):
                self.wr |= set(R(ops[1]))
                srcs = ops[2:]
            for o in srcs:
                self.rd |= set(R(o))
            if op.startswith(('v_fmac', 'v_mac', 'v_dot2c', 'v_pk_fmac')) or self.dpp or op.startswith('v_writelane'):
                self.rd |= set(R(ops[0]))
            if op.startswith('v_cndmask') and len(ops) == 3:
                self.rd |= set(R('vcc'))
        elif op.startswith('buffer_') or op.startswith('global_'):
            mods = self.mods.split()
            if op.startswith('global_'):
                raise ValueError('global_ not modelled')
            if 'load' in op:
                self.kind = 'vload'
                if 'lds' in mods:
                    self.lds_dma = True
                    for o in ops:
                        self.rd |= set(R(o))
                    self.rd.add(('m', 0))
                else:
                    self.wr = set(R(ops[0]))
                    for o in ops[1:]:
                        self.rd |= set(R(o))
            elif 'store' in op:
                self.kind = 'vstore'
                for o in ops:
                    self.rd |= set(R(o))
                if 'x4' in op or 'x3' in op:
                    self.wide_store = set(R(ops[0]))
            elif 'atomic' in op:
                self.kind = 'vload' if 'sc0' in mods else 'vstore'
                for o in ops:
                    self.rd |= set(R(o))
                if 'sc0' in mods:
                    self.wr = set(R(ops[0]))
            else:
                self.kind = 'vstore'
        elif op.startswith('ds_'):
            if op.startswith('ds_read') or op.startswith('ds_bpermute') or op.startswith('ds_swizzle'):
                self.kind = 'dsread'
                self.wr = set(R(ops[0]))
                for o in ops[1:]:
                    self.rd |= set(R(o))
            else:
                self.kind = 'dswrite'
                for o in ops:
                    self.rd |= set(R(o))
        elif op.startswith('s_'):
            self.kind = 'salu'
            if op in ('s_branch',) or op.startswith('s_cbranch'):
                self.kind = 'branch'
                self.target = ops[0]
                if 'vcc' in op:
                    self.rd = set(R('vcc'))
            elif op in ('s_waitcnt', 's_nop', 's_barrier', 's_endpgm', 's_setprio', 's_sleep'):
                self.kind = op[2:]
            elif op.startswith('s_load') or op.startswith('s_memtime') or op.startswith('s_memrealtime'):
                self.kind = 'smem'
                self.wr = set(R(ops[0]))
                for o in ops[1:]:
                    self.rd |= set(R(o))
            elif op.startswith('s_cmp') or op.startswith('s_bitcmp'):
                for o in ops:
                    self.rd |= set(R(o))
            else:
                self.wr = set(R(ops[0]))
                for o in ops[1:]:
                    self.rd |= set(R(o))
                if 'saveexec' in op:
                    self.wr.add(('x', 0))
        else:
            raise ValueError('unknown instruction: ' + self.text)

    def states(self):
        if self.kind == 'nop':
            return int(self.ops[0], 0) + 1
        return 1


def need(p, c):
    n = 0
    pk, ck = p.kind, c.kind
    vw = {r for r in p.wr if r[0] == 'v'}
    sw = {r for r in p.wr if r[0] == 's'}
    if pk == 'valu':
        isdot = p.op.startswith('v_dot')
        if ck == 'xdl' and vw & c.rd:
            n = max(n, 3 if isdot else 2)
        if ck == 'valu':
            if vw & c.rd:
                if c.dpp or 'permlane' in c.op:
                    n = max(n, 2)
                if c.op.startswith(('v_readlane', 'v_readfirstlane')):
                    n = max(n, 1)
                if p.op.split('_e')[0] in TRANS and c.op.split('_e')[0] not in TRANS:
                    n = max(n, 1)
            if isdot and vw & (c.rd | c.wr):
                same = c.op == p.op
                if same:
                    ab = set()
                    for o in c.ops[1:3]:
                        ab |= set(parse_reg(o))
                    if vw & ab:
                        n = max(n, 3)
                else:
                    n = max(n, 3)
            if sw & c.rd:
                if c.op.startswith(('v_readlane', 'v_writelane')):
                    n = max(n, 4)
                else:
                    n = max(n, 2)
        if isdot and ck in ('vload', 'vstore', 'dsread', 'dswrite') and vw & (c.rd | c.wr):
            n = max(n, 3)
        if ck in ('vload', 'vstore') and sw & c.rd:
            n = max(n, 5)
    elif pk == 'xdl':
        if ck == 'xdl':
            if p.wr & c.srcC:
                if not (p.wr == c.srcC and p.op == c.op):
                    n = max(n, p.passes + 2)
            if p.wr & c.srcAB:
                n = max(n, p.passes + 4)
            if (p.wr & c.wr) and not (p.wr & c.srcC):
                n = max(n, p.passes + 2)
        elif ck in ('valu', 'vload', 'vstore', 'dsread', 'dswrite'):
            if p.wr & (c.rd | c.wr):
                n = max(n, p.passes + 4)
            if ck == 'valu' and p.srcC & c.wr:
                n = max(n, p.passes - 1)
    elif pk == 'vstore':
        if p.wide_store & c.wr:
            n = max(n, 2 if ck in ('valu', 'xdl') else 1)
    elif pk == 'salu':
        if ('m', 0) in p.wr and c.lds_dma:
            n = max(n, 1)
    return n


class Asm:
    def __init__(self):
        self.items = []
        self.uid = 0

    def __call__(self, text, tag=None):
        for line in text.split('\n'):
            line = line.strip()
            if not line or line.startswith(';'):
                continue
            if line.endswith(':'):
                self.items.append(('label', line[:-1]))
            elif line.startswith('.'):
                self.items.append(('raw', line))
            else:
                self.items.append(Ins(line, tag))

    def raw(self, text):
        self.items.append(('raw', text))

    def label(self, name):
        self.items.append(('label', name))

    def newlabel(self, base='L'):
        self.uid += 1
        return f'{base}_{self.uid}'

    def waitfor(self, tag):
        self.items.append(('waitfor', tag))

    def assume(self, vm=None, lgkm=None):
        self.items.append(('assume', vm, lgkm))

    def fork(self):
        self.items.append(('fork',))

    def rejoin(self):
        self.items.append(('rejoin',))

    def insert_waits(self):
        out = []
        vm, lg = [], []
        smem = []

        def emit(vmn=None, lgn=None):
            s = 's_waitcnt'
            if vmn is not None:
                s += f' vmcnt({min(vmn, 63)})'
                del vm[:len(vm) - min(vmn, 63)]
            if lgn is not None:
                s += f' lgkmcnt({min(lgn, 15)})'
                del lg[:len(lg) - min(lgn, 15)]
            out.append(Ins(s))

        for it in self.items:
            if isinstance(it, tuple):
                if it[0] == 'waitfor':
                    tag = it[1]
                    iv = max([i for i, o in enumerate(vm) if o[1] == tag], default=None)
                    il = max([i for i, o in enumerate(lg) if o[1] == tag], default=None)
                    if iv is not None or il is not None:
                        emit(None if iv is None else len(vm) - 1 - iv, None if il is None else len(lg) - 1 - il)
                    continue
                if it[0] == 'fork':
                    saved = (list(vm), list(lg), list(smem))
                    continue
                if it[0] == 'rejoin':
                    vm[:], lg[:], smem[:] = saved
                    continue
                if it[0] == 'assume':
                    if it[1] is not None:
                        vm.clear()
                    if it[2] is not None:
                        lg.clear()
                        smem.clear()
                    continue
                out.append(it)
                continue
            ins = it
            if ins.kind == 'waitcnt':
                m = re.search(r'vmcnt\((\d+)\)', ins.text)
                if m:
                    n = int(m.group(1))
                    del vm[:max(0, len(vm) - n)]
                m = re.search(r'lgkmcnt\((\d+)\)', ins.text)
                if m:
                    n = int(m.group(1))
                    del lg[:max(0, len(lg) - n)]
                    if n == 0:
                        smem.clear()
                out.append(ins)
                continue
            touched = ins.rd | ins.wr
            if ins.kind in ('vload',) and not ins.lds_dma:
                touched_vm = ins.rd
            else:
                touched_vm = touched
            touched_lg = ins.rd if ins.kind == 'dsread' else touched
            iv = max([i for i, o in enumerate(vm) if o[0] & touched_vm], default=None)
            il = max([i for i, o in enumerate(lg) if o[0] & touched_lg], default=None)
            if any(o & touched for o in smem):
                emit(None if iv is None else len(vm) - 1 - iv, 0)
                smem.clear()
            elif iv is not None or il is not None:
                emit(None if iv is None else len(vm) - 1 - iv,
                     None if il is None else (0 if smem else len(lg) - 1 - il))
                if il is not None and smem:
                    smem.clear()
            if ins.tag == 'nc':
                pass
            elif ins.kind in ('vload', 'vstore'):
                vm.append((set(ins.wr), ins.tag))
            elif ins.kind in ('dsread', 'dswrite'):
                lg.append((set(ins.wr), ins.tag))
            elif ins.kind == 'smem':
                smem.append(set(ins.wr))
            out.append(ins)
        self.items = out

    def insert_nops(self):
        WIN = 14
        for _ in range(20):
            items = self.items
            labels = {it[1]: i for i, it in enumerate(items) if isinstance(it, tuple) and it[0] == 'label'}
            add = {}

            def check(hist, i):
                c = items[i]
                have = add.get(i, 0)
                req = 0
                h = hist[-WIN:]
                for k, p in enumerate(h):
                    n = need(p, c)
                    if not n:
                        continue
                    t = p.states()
                    free = p.passes if p.kind == 'xdl' else 0
                    for q in h[k + 1:]:
                        if q.kind == 'xdl':
                            t = max(t, free)
                            free = t + q.passes
                        t += q.states()
                    if c.kind == 'xdl' and free - 1 >= n:
                        continue
                    if t + have - 1 < n:
                        req = max(req, n + 1 - t - have)
                if req:
                    add[i] = have + req

            def walk(hist, i, budget, depth):
                hist = list(hist)
                while i < len(items) and budget > 0:
                    it = items[i]
                    if isinstance(it, tuple):
                        i += 1
                        continue
                    check(hist, i)
                    if add.get(i):
                        hist.append(Ins(f's_nop {min(add[i], 16) - 1}'))
                        budget -= add[i]
                    hist.append(it)
                    budget -= it.states()
                    if it.kind == 'branch':
                        if depth < 3 and it.target in labels:
                            walk(hist[-WIN:], labels[it.target], budget, depth + 1)
                        if it.op == 's_branch':
                            return
                    if it.kind == 'endpgm':
                        return
                    i += 1

            hist = []
            for i, it in enumerate(items):
                if isinstance(it, tuple):
                    continue
                check(hist, i)
                if add.get(i):
                    hist.append(Ins(f's_nop {min(add[i], 16) - 1}'))
                hist.append(it)
                hist = hist[-WIN:]
                if it.kind == 'branch' and it.target in labels:
                    walk(hist, labels[it.target], WIN, 0)
                if it.kind == 'endpgm' or it.op == 's_branch':
                    hist = []
            if not add:
                return
            out = []
            for i, it in enumerate(items):
                if i in add:
                    n = add[i]
                    while n > 0:
                        k = min(n, 16)
                        out.append(Ins(f's_nop {k - 1}'))
                        n -= k
                out.append(it)
            self.items = out
        raise RuntimeError('hazard pass did not converge')

    def text(self):
        self.insert_waits()
        self.insert_nops()
        out = []
        for it in self.items:
            if isinstance(it, tuple):
                out.append(it[1] + ':' if it[0] == 'label' else it[1])
            else:
                out.append('  ' + it.text)
        return '\n'.join(out) + '\n'


def vr(base, n=1):
    k, b = ('a', base - 256) if base >= 256 else ('v', base)
    if base < 256:
        assert base + n <= 256, (base, n)
    return f'{k}{b}' if n == 1 else f'{k}[{b}:{b + n - 1}]'


def sr(base, n=1):
    return f's{base}' if n == 1 else f's[{base}:{base + n - 1}]'
```

```python
from asmlib import Asm, vr, sr

NAME = 'sequential_preLN__memory_aug_recurrent_mem_tr__glu_gated_bilinear__prompt'

S_X, S_M0, S_WQ, S_WK, S_WV, S_WO, S_WG, S_WU, S_WD, S_OUT, S_DBG, S_WS = range(8, 56, 4)
SIZES = {S_X: 2048 * 1152, S_M0: 8 * 1152, S_WQ: 576 * 8192, S_WK: 576 * 8192, S_WV: 576 * 8192,
         S_WO: 4096 * 1152, S_WG: 576 * 9216, S_WU: 576 * 9216, S_WD: 4608 * 1152, S_OUT: 2048 * 1152,
         S_DBG: 256, S_WS: 0x10000000}
KOFF = {S_X: 0, S_M0: 8, S_WQ: 16, S_WK: 24, S_WV: 32, S_WO: 40, S_WG: 64, S_WU: 72, S_WD: 80, S_OUT: 88,
        S_DBG: 96, S_WS: 104}
S_ROLE, S_WAVE = 4, 5


def srd(b):
    return f's[{b}:{b + 3}]'


QB, KB, VB = 0x0, 0x1000000, 0x2000000
OB = 0x3000000
ACT = 0x4100000
HB = 0x5400000
HSEG = 40960
KMVM = 0x5800000
MEM = 0x6800000
PART = 0x6A00000
PBUF = 0x80000
FLAGS = 0x6B00000
DIAG = 0x7000000

D_TICK0 = 0
D_TICK = 128
D_TOTAL = 160
D_CNTA = 164
D_CNTW = 168
D_CNTG = 172
D_CNTC = 176
D_INIT = 64
D_OVF = 68


def prologue(a):
    a('s_load_dwordx16 s[64:79], s[0:1], 0')
    a('s_load_dwordx8 s[80:87], s[0:1], 64')
    a('s_load_dwordx4 s[88:91], s[0:1], 96')
    a('v_lshrrev_b32 v1, 6, v0')
    a('v_and_b32 v0, 63, v0')
    a(f'v_readfirstlane_b32 s{S_WAVE}, v1')
    for b, sz in SIZES.items():
        a(f's_mov_b32 s{b + 2}, {hex(sz)}')
        a(f's_mov_b32 s{b + 3}, 0x20000')
    a('s_waitcnt lgkmcnt(0)')
    for b, off in KOFF.items():
        a(f's_mov_b32 s{b}, s{64 + off // 4}')
        a(f's_and_b32 s{b + 1}, s{65 + off // 4}, 0xffff')


def descriptor(name):
    return f'''.section .rodata,"a"
.p2align 6
.amdhsa_kernel {name}
  .amdhsa_next_free_vgpr 512
  .amdhsa_next_free_sgpr 102
  .amdhsa_accum_offset 256
  .amdhsa_group_segment_fixed_size 0
  .amdhsa_kernarg_size 112
  .amdhsa_user_sgpr_count 2
  .amdhsa_user_sgpr_kernarg_segment_ptr 1
  .amdhsa_system_sgpr_workgroup_id_x 1
.end_amdhsa_kernel
'''


def kernel_text(name, body):
    return f'.text\n.globl {name}\n.p2align 8\n.type {name},@function\n{name}:\n{body}' + descriptor(name)


def file_text(launches, kernels):
    hdr = '; generated by gen/build.py\n'
    if len(launches) == 1 and launches[0][0] == NAME + '_kernel':
        hdr += f'; @launch grid=({launches[0][1]},1,1) block=(256,1,1) lds={launches[0][2]}\n'
    else:
        for k, g, l in launches:
            hdr += f'; @launch kernel={k} grid=({g},1,1) block=(256,1,1) lds={l}\n'
    hdr += '.amdgcn_target "amdgcn-amd-amdhsa--gfx950"\n'
    return hdr + ''.join(kernel_text(n, b) for n, b in kernels)


class Sched:
    @staticmethod
    def weave(a, backbone, fillers, per=None):
        n = len(backbone)
        k = len(fillers)
        pos = 0
        for i, b in enumerate(backbone):
            for x in (b if isinstance(b, list) else [b]):
                emit(a, x)
            tgt = (k * (i + 1) + n - 1) // n if per is None else min(k, per * (i + 1))
            while pos < tgt:
                emit(a, fillers[pos])
                pos += 1
        while pos < k:
            emit(a, fillers[pos])
            pos += 1


def emit(a, x):
    if isinstance(x, tuple):
        if x[0] == 'waitfor':
            a.waitfor(x[1])
        elif x[0] == 'RAW':
            a.raw(x[1])
        else:
            a(x[0], tag=x[1])
    elif isinstance(x, str) and x.startswith('@'):
        pstamp(a, x[1:])
    elif isinstance(x, list):
        for y in x:
            emit(a, y)
    else:
        a(x)


STAT1 = 0x6C00000


def poll_dbg(a, off, target, vt, st, limit=1 << 20):
    L = a.newlabel('POLLD')
    E = a.newlabel('POLLE')
    a(f's_mov_b32 s{st}, {limit}')
    a.label(L)
    a(f'buffer_load_dword v{vt}, off, {srd(S_DBG)}, 0 offset:{off} sc1')
    a('s_waitcnt vmcnt(0)')
    a(f'v_readfirstlane_b32 s{st + 1}, v{vt}')
    a(f's_sub_u32 s{st}, s{st}, 1')
    a(f's_cbranch_scc1 {E}')
    a(f's_cmp_lt_u32 s{st + 1}, {target}')
    a(f's_cbranch_scc1 {L}')
    a.label(E)


DIAG_ON = [False]
OPT = {}


def stamp(a, idx, real=False, vt=254, allwaves=False):
    if not DIAG_ON[0]:
        return
    L = a.newlabel('ST')
    a(f'{"s_memrealtime" if real else "s_memtime"} s[96:97]')
    a(f's_lshl_b32 s98, s{S_ROLE}, 2')
    a(f's_add_u32 s98, s98, s{S_WAVE}')
    a(f's_lshl_b32 s98, s98, 12')
    a(f's_add_u32 s98, s98, {DIAG}')
    a('s_waitcnt lgkmcnt(0)')
    a(f'v_mov_b32 v{vt}, s96')
    a(f'v_mov_b32 v{vt + 1}, s97')
    a(f'buffer_store_dwordx2 v[{vt}:{vt + 1}], off, {srd(S_WS)}, s98 offset:{idx * 8}')


PSREG = list(range(8, 48, 2)) + list(range(86, 92, 2))
PSN = []


def pstamp(a, name):
    if not DIAG_ON[0] or OPT.get('nois'):
        return
    only = OPT.get('ps')
    if only and name not in only.split(','):
        return
    r = PSREG[len(PSN)]
    PSN.append(name)
    a.raw(f'  s_memtime s[{r}:{r + 1}]')


ACC = []


def acc_init(a):
    if not DIAG_ON[0] or not OPT.get('acc'):
        return
    for k, pr in enumerate(OPT['acc'].split(',')):
        r = PSREG[-1 - k]
        ACC.append((pr, r))
        a(f's_mov_b32 s{r}, 0')
        a(f's_mov_b32 s{r + 1}, 0')


def acc_step(a):
    if not DIAG_ON[0] or not OPT.get('acc') or OPT.get('nois'):
        return
    a('s_waitcnt lgkmcnt(0)')
    for pr, r in ACC:
        x, y = pr.split(':')
        a(f's_sub_u32 s99, s{PSREG[PSN.index(y)]}, s{PSREG[PSN.index(x)]}')
        a(f's_max_u32 s{r}, s{r}, s99')
        a(f's_add_u32 s{r + 1}, s{r + 1}, s99')


def pstamp_dump(a, vt=4):
    if not DIAG_ON[0] or OPT.get('nois'):
        return
    a('s_waitcnt lgkmcnt(0)')
    for k, n in enumerate(PSN):
        a(f'v_mov_b32 v{vt}, s{PSREG[k]}')
        a(f'v_mov_b32 v{vt + 1}, s{PSREG[k] + 1}')
        a(f'buffer_store_dwordx2 v[{vt}:{vt + 1}], off, {srd(S_WS)}, s98 offset:{(8 + k) * 8}')
        a('s_nop 1')
    for k, (pr, r) in enumerate(ACC):
        a(f'v_mov_b32 v{vt}, s{r}')
        a(f'v_mov_b32 v{vt + 1}, s{r + 1}')
        a(f'buffer_store_dwordx2 v[{vt}:{vt + 1}], off, {srd(S_WS)}, s98 offset:{(40 + k) * 8}')
        a('s_nop 1')
    a.raw('; PSTAMPS ' + ' '.join(PSN))
    a.raw('; ACCS ' + ' '.join(pr for pr, r in ACC))


def init_done(a, tag, vt):
    a.waitfor(tag)
    a('s_barrier')
    L = a.newlabel('ID')
    a(f's_cmp_lg_u32 s{S_WAVE}, 0')
    a(f's_cbranch_scc1 {L}')
    a('s_mov_b64 exec, 1')
    a(f'v_mov_b32 v{vt}, 1')
    a(f'buffer_atomic_add v{vt}, off, {srd(S_DBG)}, 0 offset:{D_INIT} sc1', tag='nc')
    a('s_mov_b64 exec, -1')
    a.label(L)
    stamp(a, 7, real=True, vt=OPT.get('ivt', 254))


def wait_init(a, vt, st):
    poll_dbg(a, D_INIT, 32, vt, st)


BUDGET = 1 << 17


def lstamp(a, sS, k, vt, n=4):
    if not DIAG_ON[0] or OPT.get('nols'):
        return
    a('s_memrealtime s[96:97]')
    a(f's_lshl_b32 s98, s{S_ROLE}, 2')
    a(f's_add_u32 s98, s98, s{S_WAVE}')
    a(f's_lshl_b32 s98, s98, 12')
    a(f's_mul_i32 s99, s{sS}, {8 * n}')
    a(f's_add_u32 s98, s98, s99')
    a(f's_add_u32 s98, s98, {DIAG + 64 * 8 + 8 * k}')
    a('s_waitcnt lgkmcnt(0)')
    a(f'v_mov_b32 v{vt}, s96')
    a(f'v_mov_b32 v{vt + 1}, s97')
    a(f'buffer_store_dwordx2 v[{vt}:{vt + 1}], off, {srd(S_WS)}, s98', tag='nc')


class CS_:
    def __init__(self, a, first, last):
        self.a, self.regs, self.names = a, list(range(first, last, 2)), []

    def __call__(self, name):
        if not DIAG_ON[0]:
            return []
        r = self.regs[len(self.names)]
        self.names.append(name)
        return [('RAW', f'  s_memtime s[{r}:{r + 1}]')]

    def dump(self, vt, role):
        a = self.a
        if not DIAG_ON[0]:
            return
        a('s_waitcnt lgkmcnt(0)')
        a(f's_lshl_b32 s98, s{S_ROLE}, 2')
        a(f's_add_u32 s98, s98, s{S_WAVE}')
        a(f's_lshl_b32 s98, s98, 12')
        a(f's_add_u32 s98, s98, {DIAG}')
        for k, n in enumerate(self.names):
            a(f'v_mov_b32 v{vt}, s{self.regs[k]}')
            a(f'v_mov_b32 v{vt + 1}, s{self.regs[k] + 1}')
            a(f'buffer_store_dwordx2 v[{vt}:{vt + 1}], off, {srd(S_WS)}, s98 offset:{(8 + k) * 8}')
            a('s_nop 1')
        a.raw(f'; CSTAMPS {role} ' + ' '.join(self.names))
```

```python
from common import *
from role_chain import gen_chain
from role_qkv import gen_qkv
from role_a import gen_a
from role_g import gen_g
from role_wd import gen_wd


def gen_mega():
    a = Asm()
    prologue(a)
    a('s_cmp_ge_u32 s2, 256')
    a('s_cbranch_scc1 EXIT')
    a('s_getreg_b32 s6, hwreg(HW_REG_XCC_ID, 0, 3)')
    if OPT.get('xcc'):
        a(OPT['xcc'].replace('_', ' ', 0))
    a(f's_cmp_lg_u32 s{S_WAVE}, 0')
    a('s_cbranch_scc1 GOTROLE')
    a('s_lshl_b32 s7, s6, 2')
    a(f's_add_u32 s7, s7, {D_TICK}')
    a('s_cmp_eq_u32 s6, 0')
    a(f's_cselect_b32 s7, {D_TICK0}, s7')
    a('s_mov_b64 exec, 1')
    a('v_mov_b32 v1, 1')
    a(f'buffer_atomic_add v1, off, {srd(S_DBG)}, s7 sc0 sc1')
    a('s_mov_b64 exec, -1')
    a('v_readfirstlane_b32 s60, v1')
    a('s_lshl_b32 s61, s6, 5')
    a('s_add_u32 s61, s61, s60')
    a('s_cmp_lt_u32 s60, 32')
    a('s_cbranch_scc1 PUTROLE')
    a('s_mov_b64 exec, 1')
    a('v_mov_b32 v1, 1')
    a(f'buffer_atomic_add v1, off, {srd(S_DBG)}, 0 offset:{D_OVF} sc0 sc1')
    a('s_mov_b64 exec, -1')
    a('v_readfirstlane_b32 s60, v1')
    a('v_and_b32 v2, 7, v0')
    a('v_lshlrev_b32 v3, 2, v2')
    a(f'v_add_u32 v3, {D_TICK}, v3')
    a('v_cmp_eq_u32 vcc, 0, v2')
    a(f'v_cndmask_b32_e64 v3, v3, {D_TICK0}, vcc')
    a(f's_mov_b32 s62, {BUDGET}')
    a.label('OVP')
    a(f'buffer_load_dword v1, v3, {srd(S_DBG)}, 0 offen sc1')
    a('s_waitcnt vmcnt(0)')
    a('s_mov_b32 s63, 0')
    for g in range(8):
        a(f'v_readlane_b32 s{64 + g}, v1, {g}')
        a(f's_add_u32 s63, s63, s{64 + g}')
    a('s_sub_u32 s62, s62, 1')
    a('s_cbranch_scc1 OVE')
    a('s_cmp_lt_u32 s63, 256')
    a('s_cbranch_scc1 OVP')
    a.label('OVE')
    a('s_mov_b32 s61, 256')
    for g in range(8):
        a(f's_min_u32 s63, s{64 + g}, 32')
        a(f's_add_u32 s62, s63, s60')
        a(f's_add_u32 s7, s62, {32 * g}')
        a('s_cmp_lt_u32 s62, 32')
        a('s_cselect_b32 s61, s7, s61')
        a('s_sub_u32 s60, s62, 32')
        a('s_cmp_lt_u32 s62, 32')
        a('s_cselect_b32 s60, 0x10000, s60')
    a.label('PUTROLE')
    a('v_mov_b32 v1, s61')
    a('v_mov_b32 v2, 0')
    a('ds_write_b32 v2, v1')
    a('s_waitcnt lgkmcnt(0)')
    a.label('GOTROLE')
    a('s_barrier')
    a('v_mov_b32 v2, 0')
    a('ds_read_b32 v1, v2')
    a(f'v_readfirstlane_b32 s{S_ROLE}, v1')
    a('s_barrier')
    a(f's_cmp_ge_u32 s{S_ROLE}, 256')
    a('s_cbranch_scc1 EXIT')
    a(f's_lshr_b32 s6, s{S_ROLE}, 5')
    a(f's_and_b32 s7, s{S_ROLE}, 31')
    a('s_cmp_eq_u32 s6, 0')
    a('s_cbranch_scc1 R_C')
    a('s_cmp_ge_u32 s6, 5')
    a('s_cbranch_scc1 R_HIGH')
    a('s_sub_u32 s6, s6, 1')
    a('s_cmp_lt_u32 s7, 24')
    a('s_cbranch_scc1 R_LOW')
    a('s_lshl_b32 s6, s6, 3')
    a('s_add_u32 s7, s7, s6')
    a('s_sub_u32 s7, s7, 24')
    a('s_branch R_A')
    a.label('R_LOW')
    a('s_mul_i32 s6, s6, 24')
    a('s_add_u32 s7, s7, s6')
    a('s_cmp_lt_u32 s7, 48')
    a('s_cbranch_scc1 R_W')
    a('s_sub_u32 s7, s7, 48')
    a('s_branch R_D')
    a.label('R_HIGH')
    a('s_sub_u32 s6, s6, 5')
    a('s_lshl_b32 s6, s6, 4')
    a('s_cmp_lt_u32 s7, 16')
    a('s_cselect_b32 s60, 0, 16')
    a('s_add_u32 s7, s7, s6')
    a('s_sub_u32 s7, s7, s60')
    a('s_cmp_eq_u32 s60, 16')
    a('s_cbranch_scc1 R_Q')
    only = OPT.get('only')
    OPT['ainit'] = '1'
    for nm, fn in (('G', lambda: gen_g(a, 7)), ('D', lambda: gen_wd(a, 7, 1)), ('W', lambda: gen_wd(a, 7, 0)),
                   ('A', lambda: gen_a(a, 7)), ('Q', lambda: gen_qkv(a, 7)), ('C', lambda: gen_chain(a, 7))):
        a.label('R_' + nm)
        a.assume(vm=0, lgkm=0)
        if only and nm not in only:
            pass
        else:
            fn()
        a('s_endpgm')
    a.label('EXIT')
    a('s_endpgm')
    return a.text()
```

```python
from common import *

SCALE_LOG2E = 0x3e0293ee


def gen_a(a, s_idx):
    sH, sS, sQ, sKM, sO, sFLG, sKQ, sKC, sE, sC, sT, sT2, sBUD, sT3 = range(56, 70)
    vQK, vV, vKM, vVM, vO, TG, t0, t1, t2 = range(1, 10)
    MX, MC, LX, AL = 10, 11, 12, 13
    FL = 16
    P, PM = 20, 28
    S, SM, BIAS = 32, 48, 64
    KM, VM = 80, 112
    O = 128
    PK, SEN = 192, 200
    Q, K, V = 256, 288, 320

    stamp(a, 0, real=True)
    a(f's_mov_b32 s{sH}, s{s_idx}')
    a(f's_lshl_b32 s{sT}, s{S_WAVE}, 18')
    a(f's_lshl_b32 s{sQ}, s{sH}, 13')
    a(f's_add_u32 s{sQ}, s{sQ}, s{sT}')
    a(f's_add_u32 s{sKM}, s{sQ}, {KMVM}')
    a(f's_add_u32 s{sQ}, s{sQ}, {QB}')
    a(f's_lshl_b32 s{sO}, s{sH}, 11')
    a(f's_add_u32 s{sO}, s{sO}, s{sT}')
    a(f's_add_u32 s{sO}, s{sO}, {OB}')
    a(f's_lshl_b32 s{sFLG}, s{sH}, 7')
    a(f's_add_u32 s{sFLG}, s{sFLG}, {FLAGS}')
    a(f's_mov_b32 s{sC}, {hex(SCALE_LOG2E)}')
    a(f's_mov_b32 s{sBUD}, {BUDGET}')
    a(f's_mov_b32 s{sS}, s{S_WAVE}')
    a(f's_mov_b32 s{sKQ}, 0')
    a(f's_mov_b32 s{sKC}, 0')
    a(f'v_lshrrev_b32 v{t0}, 5, v0')
    a(f'v_bfe_u32 v{t1}, v0, 3, 2')
    a(f'v_lshlrev_b32 v{vO}, 16, v{t1}')
    a(f'v_lshl_add_u32 v{vO}, v{t0}, 7, v{vO}')
    a(f'v_and_b32 v{t1}, 7, v0')
    a(f'v_lshl_add_u32 v{vO}, v{t1}, 4, v{vO}')
    for j in range(4):
        a(f'v_mov_b32 v{SEN + j}, -1')

    def sentinels(so, tag):
        for j in range(8):
            a(f'buffer_store_dwordx4 {vr(SEN, 4)}, v{vO}, {srd(S_WS)}, s{so} offen offset:{256 * j} sc1', tag=tag)
    XR, SA = 32, 104
    a(f'v_lshrrev_b32 v{t2}, 3, v0')
    a(f'v_mul_u32_u24 v{t2}, 1152, v{t2}')
    a(f'v_lshl_add_u32 v{t2}, v{t1}, 4, v{t2}')
    a(f's_lshl_b32 s{sE}, s{sH}, 2')
    a(f's_add_u32 s{sE}, s{sE}, s{S_WAVE}')
    a(f's_mul_i32 s{sT}, s{sE}, {16 * 1152}')
    a(f's_add_u32 s{sT2}, s{sT}, {8 * 1152}')
    for g in range(2):
        for j in range(9):
            a(f'buffer_load_dwordx4 {vr(XR + 36 * g + 4 * j, 4)}, v{t2}, {srd(S_X)}, s{(sT, sT2)[g]} offen offset:{128 * j}')
    a(f'v_mov_b64 {vr(SA, 2)}, 0')
    a(f'v_mov_b64 {vr(SA + 2, 2)}, 0')
    a(f'buffer_store_dwordx4 {vr(SA, 4)}, off, {srd(S_WS)}, s{sFLG} sc1', tag='init')
    a(f'v_lshlrev_b32 v{t2}, 4, v0')
    a(f's_lshl_b32 s{sT2}, s{sE}, 10')
    for base, n in ((PART, 3), (PART + PBUF, 3), (MEM, 1), (HB, 1), (ACT, 5)):
        for i in range(n):
            a(f's_add_u32 s{sT}, s{sT2}, {base + i * 0x20000}')
            a(f'buffer_store_dwordx4 {vr(SEN, 4)}, v{t2}, {srd(S_WS)}, s{sT} offen sc1', tag='init')
    sentinels(sO, 'init')
    a(f's_lshl_b32 s{sT}, s{sH}, 13')
    a(f's_lshl_b32 s{sT2}, s{S_WAVE}, 11')
    a(f's_add_u32 s{sT}, s{sT}, s{sT2}')
    a(f's_add_u32 s{sT}, s{sT}, {KMVM + 63 * 0x40000}')
    for j in range(2):
        a(f'buffer_store_dwordx4 {vr(SEN, 4)}, v{t2}, {srd(S_WS)}, s{sT} offen offset:{1024 * j} sc1', tag='init')
    a(f's_mov_b32 s{sT}, 0x3f803f80')
    for j in range(36):
        for g in range(2):
            r = XR + 36 * g + j
            a(f'v_dot2_f32_bf16 v{SA + 2 * g}, v{r}, s{sT}, v{SA + 2 * g}')
            a(f'v_dot2_f32_bf16 v{SA + 2 * g + 1}, v{r}, v{r}, v{SA + 2 * g + 1}')
    for m in ('quad_perm:[1,0,3,2]', 'quad_perm:[2,3,0,1]', 'row_half_mirror'):
        for j in range(4):
            a(f'v_add_f32_dpp v{SA + j}, v{SA + j}, v{SA + j} {m} row_mask:0xf bank_mask:0xf')
    a(f'v_and_b32 v{t2}, 2, v0')
    a(f'v_cmp_eq_u32 vcc, 0, v{t2}')
    a(f'v_cndmask_b32 v{SA}, v{SA + 2}, v{SA}, vcc')
    a(f'v_cndmask_b32 v{SA + 1}, v{SA + 3}, v{SA + 1}, vcc')
    a(f'v_mul_f32 v{SA}, 0x3ae38e39, v{SA}')
    a(f'v_mul_f32 v{SA + 1}, 0x3ae38e39, v{SA + 1}')
    a(f'v_fma_f32 v{SA + 1}, -v{SA}, v{SA}, v{SA + 1}')
    a(f'v_max_f32 v{SA + 1}, 0, v{SA + 1}')
    a(f'v_add_f32 v{SA + 1}, 0x3727c5ac, v{SA + 1}')
    a(f'v_rsq_f32 v{SA + 1}, v{SA + 1}')
    a(f'v_lshlrev_b32 v{SA + 2}, 4, v{t2}')
    a(f'v_lshrrev_b32 v{t2}, 3, v0')
    a(f'v_lshl_add_u32 v{SA + 2}, v{t2}, 2, v{SA + 2}')
    a(f'v_and_b32 v{t2}, 1, v0')
    a(f'v_cmp_eq_u32 vcc, 0, v{t2}')
    a(f'v_cndmask_b32 v{SA}, v{SA + 1}, v{SA}, vcc')
    a(f'v_lshl_add_u32 v{SA + 2}, v{t2}, 7, v{SA + 2}')
    a(f's_lshr_b32 s{sT}, s{sE}, 1')
    a(f's_lshl_b32 s{sT}, s{sT}, 8')
    a(f's_and_b32 s{sT2}, s{sE}, 1')
    a(f's_lshl_b32 s{sT2}, s{sT2}, 6')
    a(f's_add_u32 s{sT}, s{sT}, s{sT2}')
    a(f's_add_u32 s{sT}, s{sT}, {STAT1}')
    a(f'buffer_store_dword v{SA}, v{SA + 2}, {srd(S_WS)}, s{sT} offen sc1', tag='init')
    a(f'v_lshlrev_b32 v{vKM}, 8, v{t0}')
    a(f'v_lshl_add_u32 v{vKM}, v{t1}, 4, v{vKM}')
    a(f'v_bfe_u32 v{t2}, v0, 3, 1')
    a(f'v_lshl_add_u32 v{vQK}, v{t2}, 10, v{vKM}')
    a(f'v_bfe_u32 v{t2}, v0, 4, 1')
    a(f'v_lshl_add_u32 v{vQK}, v{t2}, 7, v{vQK}')
    a(f'v_bfe_u32 v{t1}, v0, 3, 2')
    a(f'v_and_b32 v{t2}, 3, v0')
    a(f'v_lshl_add_u32 v{t1}, v{t1}, 2, v{t2}')
    a(f'v_lshlrev_b32 v{t1}, 4, v{t1}')
    a(f'v_lshl_add_u32 v{t1}, v{t0}, 8, v{t1}')
    a(f'v_bfe_u32 v{t2}, v0, 2, 1')
    a(f'v_lshl_add_u32 v{vV}, v{t2}, 10, v{t1}')
    a(f'v_lshl_add_u32 v{vVM}, v{t2}, 3, v{t1}')
    a(f'v_and_b32 v{t1}, 31, v0')
    a(f'v_lshlrev_b32 v{t2}, 2, v{t0}')
    a(f'v_sub_u32 v{t1}, v{t1}, v{t2}')
    a(f'v_mov_b32 v{t2}, 0xf149f2ca')
    for r in range(16):
        a(f'v_cmp_le_i32 vcc, {8 * (r >> 2) + (r & 3)}, v{t1}')
        a(f'v_cndmask_b32_e64 v{BIAS + r}, v{t2}, 0, vcc')
    init_done(a, 'init', t0)
    wait_init(a, t0, sT)

    def upd():
        a(f'v_min_u32 v{FL}, v{FL}, v{FL + 1}')
        a(f'v_readfirstlane_b32 s{sKC}, v{FL + 2}')
        a(f'v_readfirstlane_b32 s{sKQ}, v{FL}')

    def flagld():
        a(f'buffer_load_dwordx4 {vr(FL, 4)}, off, {srd(S_WS)}, s{sFLG} sc1', tag='nc')

    def poll(reg, delta, cap):
        Lp, Lok = a.newlabel('AP'), a.newlabel('AO')
        a(f's_add_u32 s{sT}, s{sS}, {delta}')
        a(f's_min_u32 s{sT}, s{sT}, {cap}')
        a.label(Lp)
        a(f's_cmp_ge_u32 s{reg}, s{sT}')
        a(f's_cbranch_scc1 {Lok}')
        flagld()
        a.raw('  s_waitcnt vmcnt(0)')
        upd()
        a(f's_sub_i32 s{sBUD}, s{sBUD}, 1')
        a(f's_cmp_ge_i32 s{sBUD}, 0')
        a(f's_cbranch_scc1 {Lp}')
        a.label(Lok)

    def qkv():
        for m, (R, vo) in enumerate(((K, vQK), (Q, vQK), (V, vV))):
            d = (KB - QB, 0, VB - QB)[m]
            a(f's_add_u32 s{sT}, s{sQ}, {d}')
            a(f's_add_u32 s{sT2}, s{sQ}, {d + 4096}')
            for j in range(8):
                a(f'buffer_load_dwordx4 {vr(R + 4 * j, 4)}, v{vo}, {srd(S_WS)}, s{sT if j < 4 else sT2} offen offset:{(j & 3) * 512 + (j & 2) * 512} sc1')

    def kmvm():
        a(f's_add_u32 s{sT2}, s{sKM}, 4096')
        for j in range(8):
            a(f'buffer_load_dwordx4 {vr(KM + 4 * j, 4)}, v{vKM}, {srd(S_WS)}, s{sKM if j < 4 else sT2} offen offset:{(j & 1) * 512 + (j & 2) * 1024} sc1', tag='nc')
        for j in range(8):
            a(f'buffer_load_dwordx2 {vr(VM + 2 * j, 2)}, v{vVM}, {srd(S_WS)}, s{sKM if j < 4 else sT2} offen offset:{1024 + (j & 1) * 512 + (j & 2) * 1024} sc1', tag='nc')

    def mf(d, A, B, C):
        a(f'v_mfma_f32_32x32x16_bf16 {vr(d, 16)}, {vr(A, 4)}, {vr(B, 4)}, {C}')

    def xhalf(op, r, t):
        a(f'v_mov_b32 v{t}, v{r}')
        a(f'v_permlane32_swap_b32 v{r}, v{t}')
        a(f'v_{op}_f32 v{r}, v{r}, v{t}')

    stamp(a, 1, real=True, vt=P)
    Ltop = a.newlabel('AT')
    a.label(Ltop)
    a.assume(vm=0, lgkm=0)
    if True:
        L5, L6 = (a.newlabel('A') for _ in range(2))
        a(f's_add_u32 s{sT3}, s{sO}, 0x100000')
        a(f's_cmp_lt_u32 s{sS}, 60')
        a(f's_cselect_b32 s{sT3}, s{sT3}, 0x10000000')
        sentinels(sT3, 'nc')
        poll(sKQ, 1, 64)
        qkv()
        a(f's_add_u32 s{sQ}, s{sQ}, 0x100000')
        for j in range(8):
            mf(S, K + 4 * j, Q + 4 * j, vr(BIAS if j == 0 else S, 16))
        a(f'v_max3_f32 v{MX}, v{S}, v{S + 1}, v{S + 2}')
        a(f'v_max3_f32 v{t0}, v{S + 3}, v{S + 4}, v{S + 5}')
        for r in range(6, 14, 4):
            a(f'v_max3_f32 v{MX}, v{S + r}, v{S + r + 1}, v{MX}')
            a(f'v_max3_f32 v{t0}, v{S + r + 2}, v{S + r + 3}, v{t0}')
        a(f'v_max3_f32 v{MX}, v{S + 14}, v{S + 15}, v{MX}')
        a(f'v_max_f32 v{MX}, v{MX}, v{t0}')
        xhalf('max', MX, t0)
        a(f'v_mul_f32 v{MC}, s{sC}, v{MX}')
        for r in range(16):
            a(f'v_fma_f32 v{S + r}, v{S + r}, s{sC}, -v{MC}')
        for r in range(16):
            a(f'v_exp_f32 v{S + r}, v{S + r}')
        for r in range(0, 16, 2):
            a(f'v_cvt_pk_bf16_f32 v{P + r // 2}, v{S + r}, v{S + r + 1}')
        sums = [f'v_add_f32 v{S + r}, v{S + r}, v{S + r + 8}' for r in range(8)] + \
               [f'v_add_f32 v{S + r}, v{S + r}, v{S + r + 4}' for r in range(4)] + \
               [f'v_add_f32 v{S}, v{S}, v{S + 2}', f'v_add_f32 v{S + 1}, v{S + 1}, v{S + 3}', f'v_add_f32 v{LX}, v{S}, v{S + 1}']
        for c in range(2):
            for w in range(4):
                mf(O + 16 * w, V + 4 * (2 * w + c), P + 4 * c, '0' if c == 0 else vr(O + 16 * w, 16))
                emit(a, sums[:2])
                sums = sums[2:]
        poll(sKC, 1, 63)
        a.label(L6)
        kmvm()
        a.raw('  s_waitcnt vmcnt(0)')
        a(f'v_max3_u32 v{TG}, v{KM}, v{KM + 1}, v{KM + 2}')
        for j in range(3, 47, 2):
            a(f'v_max3_u32 v{TG}, v{KM + j}, v{KM + j + 1}, v{TG}')
        a(f'v_max_u32 v{TG}, v{KM + 47}, v{TG}')
        a(f'v_cmp_eq_u32 vcc, -1, v{TG}')
        a(f's_sub_i32 s{sBUD}, s{sBUD}, 1')
        a(f's_cmp_lt_i32 s{sBUD}, 0')
        a(f's_cbranch_scc1 {L5}')
        a(f's_cbranch_vccnz {L6}')
        a.label(L5)
        lstamp(a, sS, 0, 204)
        for j in range(8):
            mf(SM, KM + 4 * j, Q + 4 * j, '0' if j == 0 else vr(SM, 16))
        a(f's_add_u32 s{sKM}, s{sKM}, 0x100000')
        a(f'v_max3_f32 v{t0}, v{SM}, v{SM + 1}, v{MX}')
        a(f'v_max3_f32 v{t0}, v{SM + 2}, v{SM + 3}, v{t0}')
        xhalf('max', t0, t1)
        a(f'v_mul_f32 v{t0}, s{sC}, v{t0}')
        a(f'v_sub_f32 v{AL}, v{MC}, v{t0}')
        for r in range(4):
            a(f'v_fma_f32 v{SM + r}, v{SM + r}, s{sC}, -v{t0}')
        a(f'v_exp_f32 v{AL}, v{AL}')
        for r in range(4):
            a(f'v_exp_f32 v{SM + r}, v{SM + r}')
        a(f'v_add_f32 v{t0}, v{SM}, v{SM + 1}')
        a(f'v_add_f32 v{t1}, v{SM + 2}, v{SM + 3}')
        a(f'v_fma_f32 v{t0}, v{AL}, v{LX}, v{t0}')
        a(f'v_add_f32 v{t0}, v{t0}, v{t1}')
        xhalf('add', t0, t1)
        a(f'v_rcp_f32 v{t0}, v{t0}')
        a(f'v_mul_f32 v{AL + 1}, v{AL}, v{t0}')
        for r in range(4):
            a(f'v_mul_f32 v{SM + r}, v{SM + r}, v{t0}')
        for j in range(4):
            a(f'v_cvt_pk_bf16_f32 v{PM + j}, v{SM + 2 * (j & 1)}, v{SM + 2 * (j & 1) + 1}')

        def fin(w):
            for c in range(2):
                for j in range(4):
                    r = O + 16 * w + 8 * c + 2 * j
                    a(f'v_cvt_pk_bf16_f32 v{PK + 4 * c + j}, v{r}, v{r + 1}')
                a(f'buffer_store_dwordx4 {vr(PK + 4 * c, 4)}, v{vO}, {srd(S_WS)}, s{sO} offen offset:{(4 * w + 2 * c) * 128} sc1', tag='nc')
        for w in range(4):
            for r in range(0, 16, 2):
                a(f'v_pk_mul_f32 {vr(O + 16 * w + r, 2)}, {vr(O + 16 * w + r, 2)}, {vr(AL + 1, 2)} op_sel_hi:[1,0]')
            mf(O + 16 * w, VM + 4 * w, PM, vr(O + 16 * w, 16))
            if w:
                fin(w - 1)
        fin(3)
        lstamp(a, sS, 1, 204)
        a(f's_add_u32 s{sO}, s{sO}, 0x100000')
        a(f's_add_u32 s{sS}, s{sS}, 4')
    a(f's_cmp_lt_u32 s{sS}, 64')
    a(f's_cbranch_scc1 {Ltop}')
    a('s_waitcnt vmcnt(0)')
    stamp(a, 2, real=True, vt=P)
```

```python
from common import *

REG = 40960
CLIST = [0, 1, 8, 2, 3, 4, 5, 6, 7]
SCALE_LOG2E = 0x3e0293ee


OOB = 0x10000000


def gen_chain(a, s_idx, alone=False):
    (sH, sS, sMA, sMB, sD1, sD2, sD3, sMA2, sNW, sKX, sP0, sRL0, sRL1, sMST, sFLG, sKNOWN, sBUD, sT, sT2, sRED,
     sC, sM0, sW36, sFAST) = range(56, 80)
    sHF, sONE, sHALF = 80, 82, 84
    sMB2, sVX, sKM, sP1, sP2, sFW, sPFK, sPFV = 6, 7, 100, 101, 92, 93, 94, 95
    sMS1, sMS2 = sH, sM0
    PST = int(OPT.get('pst', 2))
    VS, IDX, BSEL = 0, 1, 2
    M = [4 + 4 * i for i in range(9)]
    Q0, Q1, K0, K1 = 40, 44, 48, 52
    R = [56, 64]
    XA, XB = 72, 76
    streamed = [('Q', 0), ('Q', 1), ('K', 3), ('Q', 2), ('K', 2), ('V', 5), ('V', 7), ('V', 6), ('V', 8)]
    resident = [(m, s) for m in 'QKV' for s in range(9) if (m, s) not in streamed]
    resident += [('O', (l, t)) for l in range(2) for t in range(4)] + [('O', 8)]
    assert len(resident) == 27
    freg = {}
    nxt = 80
    for ch in resident:
        for cb in range(2):
            freg[ch + (cb,)] = nxt
            nxt += 8
    assert nxt == 512
    slot_of = {ch: i + 1 for i, ch in enumerate(streamed)}

    def ofrag(p, t):
        return freg[('O', 8, t)] if p == 8 else freg[('O', (p >> 1, t), p & 1)]

    def smf(d, A, B):
        return f'v_smfmac_f32_16x16x64_bf16 {vr(d, 4)}, {vr(A, 4)}, {vr(B, 8)}, v{IDX}'

    def ring(m, s, cb, r):
        off = slot_of[(m, s)] * 4096 + cb * 2048
        return [f'ds_read_b128 {vr(r, 4)}, v{VS} offset:{off}', f'ds_read_b128 {vr(r + 4, 4)}, v{VS} offset:{off + 1024}']

    cst = ['']

    def fast_store(txt):
        a(txt + cst[0])

    stamp(a, 0, real=True)
    stamp(a, 1)
    a(f's_mov_b32 s{sH}, s{s_idx}')
    a(f's_mul_i32 s{sW36}, s{S_WAVE}, {REG}')
    a(f's_sub_u32 s{sNW}, 0, s{sW36}')
    for c, sd in ((1, sD1), (2, sD2), (3, sD3)):
        a(f's_xor_b32 s{sT}, s{S_WAVE}, {c}')
        a(f's_mul_i32 s{sT}, s{sT}, {REG}')
        a(f's_sub_u32 s{sd}, s{sT}, s{sW36}')
    a(f's_lshl_b32 s{sKX}, s{sH}, 13')
    a(f's_lshl_b32 s{sT}, s{S_WAVE}, 11')
    a(f's_add_u32 s{sKX}, s{sKX}, s{sT}')
    a(f's_add_u32 s{sKX}, s{sKX}, {KB}')
    a(f's_add_u32 s{sKX}, s{sKX}, s{sNW}')
    a(f's_add_u32 s{sVX}, s{sKX}, {VB - KB}')
    a(f's_add_u32 s{sKM}, s{sKX}, {KMVM - KB}')
    a(f's_mul_i32 s{sP0}, s{S_WAVE}, {3 * 32768}')
    a(f's_lshl_b32 s{sT}, s{sH}, 10')
    a(f's_add_u32 s{sP0}, s{sP0}, s{sT}')
    a(f's_add_u32 s{sP0}, s{sP0}, {PART}')
    a(f's_add_u32 s{sP2}, s{sP0}, {2 * 32768}')
    a(f's_mov_b32 s{sHF}, 0xff00ff00')
    a(f's_mov_b32 s{sHF + 1}, 0xff00ff00')
    a(f's_mov_b32 s{sONE}, 0x3f803f80')
    a(f's_mov_b32 s{sONE + 1}, 0x3f803f80')
    a(f's_mov_b32 s{sHALF}, 0x3f003f00')
    a(f's_mov_b32 s{sHALF + 1}, 0x3f003f00')
    a(f's_lshl_b32 s{sT}, s{S_WAVE}, 5')
    a(f's_add_u32 s{sT}, s{sT}, s{sH}')
    a(f's_cmp_lt_u32 s{sT}, 72')
    a(f's_cselect_b32 s{sRED}, 1, 0')
    a(f's_cselect_b32 s{sT}, s{sT}, 0')
    a(f's_lshr_b32 s{sT2}, s{sT}, 4')
    a(f's_and_b32 s{sM0}, s{sT}, 15')
    a(f's_bfe_u32 s{sRL0}, s{sT}, {1 | 2 << 16}')
    a(f's_and_b32 s{sRL1}, s{sT}, 1')
    a(f's_add_u32 s{sRL1}, s{sRL1}, 16')
    a(f's_cmp_lt_u32 s{sT}, 64')
    a(f's_cselect_b32 s{sT2}, s{sT2}, s{sRL0}')
    a(f's_cselect_b32 s{sM0}, s{sM0}, s{sRL1}')
    a(f's_mul_i32 s{sRL0}, s{sT2}, 3')
    a(f's_lshr_b32 s{sT2}, s{sM0}, 3')
    a(f's_add_u32 s{sRL0}, s{sRL0}, s{sT2}')
    a(f's_lshl_b32 s{sRL0}, s{sRL0}, 15')
    if PST == 2:
        a(f's_and_b32 s{sT2}, s{sM0}, 7')
        a(f's_lshl_b32 s{sT2}, s{sT2}, 7')
        a(f's_add_u32 s{sRL0}, s{sRL0}, s{sT2}')
    else:
        for msk, sh in ((2, 8), (4, 6), (1, 7)):
            a(f's_and_b32 s{sT2}, s{sM0}, {msk}')
            a(f's_lshl_b32 s{sT2}, s{sT2}, {sh}')
            a(f's_add_u32 s{sRL0}, s{sRL0}, s{sT2}')
    a(f's_add_u32 s{sRL0}, s{sRL0}, {PART}')
    a(f's_add_u32 s{sRL1}, s{sRL0}, 4096')
    a(f's_lshr_b32 s{sT2}, s{sT}, 3')
    a(f's_lshl_b32 s{sMST}, s{sT2}, 10')
    if PST == 2:
        a(f's_and_b32 s{sT2}, s{sT}, 6')
        a(f's_lshl_b32 s{sT2}, s{sT2}, 7')
        a(f's_add_u32 s{sMST}, s{sMST}, s{sT2}')
        a(f's_and_b32 s{sT2}, s{sT}, 1')
        a(f's_lshl_b32 s{sT2}, s{sT2}, 6')
    else:
        a(f's_and_b32 s{sT2}, s{sT}, 7')
        a(f's_lshl_b32 s{sT2}, s{sT2}, 7')
    a(f's_add_u32 s{sMST}, s{sMST}, s{sT2}')
    a(f's_add_u32 s{sMST}, s{sMST}, {MEM}')
    a(f's_lshl_b32 s{sFLG}, s{sH}, 7')
    a(f's_add_u32 s{sFLG}, s{sFLG}, {FLAGS}')
    a(f's_cmp_eq_u32 s{S_WAVE}, 3')
    a(f's_cselect_b32 s{sFW}, s{sFLG}, {OOB}')
    a(f's_mov_b32 s{sBUD}, {1 << 20}')
    a(f's_mov_b32 s{sC}, {hex(SCALE_LOG2E)}')
    a(f's_mov_b32 s{sS}, 0')
    a(f's_mov_b32 s{sKNOWN}, 0')

    vDQ, vDO, vDS, vTO, vTP, vL, t0, t1, t2 = 4, 5, 6, 7, 8, 10, 11, 12, 13
    vTQ, vTV = (14, 15), (16, 17)
    PARK = [32, 48, 64]
    sBQ, sP19, sBO = sMA, sMB, sMA2
    a(f'v_mov_b32 v{vL}, v0')
    a(f'v_bfe_u32 v{t0}, v{vL}, 4, 1')
    a(f'v_lshlrev_b32 v{t1}, 2, v{t0}')
    a(f'v_and_b32 v{t2}, 7, v{vL}')
    a(f'v_xor_b32 v{t2}, v{t2}, v{t1}')
    a(f'v_lshrrev_b32 v{vDQ}, 5, v{vL}')
    a(f'v_add_u32 v{vDQ}, v{vDQ}, v{t1}')
    a(f'v_bfe_u32 v{t1}, v{vL}, 3, 1')
    a(f'v_lshl_add_u32 v{vDQ}, v{vDQ}, 1, v{t1}')
    a(f'v_lshlrev_b32 v{vDQ}, 13, v{vDQ}')
    a(f'v_lshl_add_u32 v{vDQ}, v{t2}, 4, v{vDQ}')
    a(f's_lshl_b32 s{sBQ}, s{sH}, 8')
    a(f's_lshr_b32 s{sT}, s{S_WAVE}, 1')
    a(f's_lshl_b32 s{sP19}, s{sT}, 21')
    a(f's_lshl_b32 s{sT}, s{sT}, 7')
    a(f's_add_u32 s{sBQ}, s{sBQ}, s{sT}')
    a(f's_and_b32 s{sT}, s{S_WAVE}, 1')
    a(f's_lshl_b32 s{sT}, s{sT}, 18')
    a(f's_add_u32 s{sBQ}, s{sBQ}, s{sT}')
    a(f'v_lshrrev_b32 v{t0}, 3, v{vL}')
    a(f'v_mul_u32_u24 v{vDO}, 1152, v{t0}')
    a(f'v_and_b32 v{t1}, 7, v{vL}')
    a(f'v_lshl_add_u32 v{vDO}, v{t1}, 4, v{vDO}')
    a(f's_mul_i32 s{sBO}, s{sH}, {128 * 1152}')
    a(f'v_lshrrev_b32 v{t0}, 4, v{vL}')
    a(f'v_lshlrev_b32 v{t0}, 1, v{t0}')
    a(f'v_bfe_u32 v{t1}, v{vL}, 2, 1')
    a(f'v_add_u32 v{t0}, v{t0}, v{t1}')
    a(f'v_bfe_u32 v{t1}, v{vL}, 3, 1')
    a(f'v_lshl_add_u32 v{t2}, v{t1}, 5, v{t0}')
    a(f'v_bfe_u32 v{t1}, v{vL}, 1, 1')
    a(f'v_lshl_add_u32 v{t2}, v{t1}, 6, v{t2}')
    a(f's_lshl_b32 s{sT}, s{S_WAVE}, 5')
    a(f'v_xor_b32 v{t2}, s{sT}, v{t2}')
    a(f'v_mul_u32_u24 v{vDS}, 1152, v{t2}')
    a(f'v_and_b32 v{t1}, 1, v{vL}')
    a(f'v_lshl_add_u32 v{vDS}, v{t1}, 4, v{vDS}')

    raw = [('Q', u) for u in (4, 5, 6, 7)] + [('K', u) for u in (1, 3, 4, 5, 6, 7)] + [('V', u) for u in (0, 1, 2, 3, 8)] + \
          [c for c in resident if c[0] == 'O'] + \
          [('Q', 0), ('Q', 1), ('K', 2), ('Q', 2), ('Q', 3), ('K', 0), ('Q', 8), ('K', 8), ('V', 4), ('V', 6), ('V', 5), ('V', 7)]
    assert len(set(raw)) == 36

    def slot(n):
        return (n - 26) % 10

    def dma(n):
        m, u = raw[n]
        if m == 'O':
            sw = S_WO
            if u == 8:
                a(f's_lshl_b32 s{sT}, s{S_WAVE}, 5')
                base, vo = 1024, vDS
            else:
                a(f's_xor_b32 s{sT}, s{S_WAVE}, {u[1]}')
                a(f's_mul_i32 s{sT}, s{sT}, {32 * 1152}')
                a(f's_lshl_b32 s{sT2}, s{S_WAVE}, 8')
                a(f's_add_u32 s{sT}, s{sT}, s{sT2}')
                base, vo = u[0] * 128, vDO
            a(f's_add_u32 s{sT}, s{sT}, s{sBO}')
            offs = [base + i * 8 * 1152 for i in range(4)]
        else:
            if u == 8:
                a(f's_add_u32 s{sT}, s{sBQ}, {8 << 19}')
            else:
                a(f's_xor_b32 s{sT}, s{sP19}, {u << 19}')
                a(f's_add_u32 s{sT}, s{sT}, s{sBQ}')
            vo = vDQ
            offs = [(16 * (i >> 1) + 4 * (i & 1)) * 8192 for i in range(4)]
            sw = {'Q': S_WQ, 'K': S_WK, 'V': S_WV}[m]
        for i in range(4):
            a(f's_add_u32 m0, s{sW36}, {slot(n) * 4096 + i * 1024}')
            a(f's_add_u32 s{sT2}, s{sT}, {offs[i]}')
            a(f'buffer_load_dwordx4 v{vo}, {srd(sw)}, s{sT2} offen lds', tag=f'w{n}')

    for n in range(10):
        dma(n)
    a(f'v_lshrrev_b32 v{t0}, 4, v{vL}')
    a(f'v_and_b32 v{t2}, 3, v{vL}')
    a(f'v_lshlrev_b32 v{vTO}, 9, v{t0}')
    a(f'v_lshl_add_u32 v{vTO}, v{t2}, 3, v{vTO}')
    a(f'v_add_u32 v{vTO}, s{sW36}, v{vTO}')
    a(f'v_bfe_u32 v{t1}, v{vL}, 2, 1')
    a(f'v_lshl_add_u32 v{vTP}, v{t1}, 7, v{vTO}')
    a(f'v_bfe_u32 v{t1}, v{vL}, 3, 1')
    a(f'v_lshl_add_u32 v{vTP}, v{t1}, 5, v{vTP}')
    a(f's_and_b32 s{sT}, s{S_WAVE}, 1')
    a(f'v_xor_b32 v{t1}, s{sT}, v{t1}')
    a(f'v_lshlrev_b32 v{t1}, 6, v{t1}')
    a(f'v_lshl_add_u32 v{t0}, v{t0}, 10, v{t1}')
    a(f'v_bfe_u32 v{t1}, v{vL}, 2, 2')
    a(f'v_lshl_add_u32 v{vTO}, v{t1}, 6, v{vTO}')
    a(f'v_lshl_add_u32 v{t0}, v{t1}, 7, v{t0}')
    a(f's_and_b32 s{sT}, s{S_WAVE}, 2')
    a(f's_mul_i32 s{sT}, s{sT}, {REG}')
    a(f'v_add_u32 v{t0}, s{sT}, v{t0}')
    a(f'v_lshl_add_u32 v{vTV[0]}, v{t2}, 4, v{t0}')
    a(f'v_bfe_u32 v{t1}, v{vL}, 1, 1')
    a(f'v_lshl_add_u32 v{vTQ[0]}, v{t1}, 5, v{t0}')
    a(f'v_and_b32 v{t1}, 1, v{vL}')
    a(f'v_lshl_add_u32 v{vTQ[0]}, v{t1}, 3, v{vTQ[0]}')
    a(f'v_add_u32 v{vTQ[1]}, {REG}, v{vTQ[0]}')
    a(f'v_add_u32 v{vTV[1]}, {REG}, v{vTV[0]}')
    a(f'v_lshlrev_b32 v{VS}, 4, v{vL}')
    a(f'v_add_u32 v{VS}, s{sW36}, v{VS}')

    def weights(e):
        free, parked = list(PARK), []

        def flush(n):
            for ch, r in list(parked):
                if slot_of[ch] <= n - 27:
                    for q in range(4):
                        a(f'ds_write_b128 v{VS}, {vr(r + 4 * q, 4)} offset:{slot_of[ch] * 4096 + q * 1024}')
                    parked.remove((ch, r))
                    free.append(r)
        for n in range(36):
            a.waitfor(f'w{n}')
            if n:
                a.waitfor(f'c{n - 1}')
            a('s_barrier')
            if n and n + 9 < 36:
                dma(n + 9)
            flush(n)
            m, u = raw[n]
            ch = (m, u) if m == 'O' else (m, CLIST.index(u if u == 8 else u ^ 2 * e))
            if ch in slot_of:
                parked.append((ch, free.pop(0)))
            for cb in range(2):
                dst = parked[-1][1] + 8 * cb if ch in slot_of else freg[ch + (cb,)]
                for c in range(2):
                    for half in range(2):
                        if m == 'O':
                            vb = vTO if u == 8 else vTP
                            off = c * 2048 + half * 256 + cb * (32 if u == 8 else 64)
                        else:
                            vb = (vTV if m == 'V' else vTQ)[c]
                            off = half * 512 + cb * (8 if m == 'V' else 16)
                        a(f'ds_read_b64_tr_b16 {vr(dst + 4 * c + 2 * half, 2)}, v{vb} offset:{slot(n) * 4096 + off}', tag=f'c{n}')
        a.waitfor('c35')
        a('s_barrier')
        flush(36)
        assert not parked
    LD, ST, TG = K0, K0 + 1, K0 + 2
    SEL, RACC = Q0, K1
    PA, PB = 9, 10

    def red_addr(t=11):
        out = [f'v_add_u32 v{t}, s{sNW}, v{VS}',
               f'v_lshrrev_b32 v{TG}, 8, v{t}']
        if PST == 2:
            out += [f'v_bfe_u32 v{ST}, v{t}, 4, 4',
                    f'v_lshlrev_b32 v{ST}, 3, v{ST}',
                    f'v_lshl_add_u32 v{LD}, v{TG}, 13, v{ST}']
        else:
            out += [f'v_and_b32 v{ST}, 0x70, v{t}',
                    f'v_lshl_add_u32 v{LD}, v{TG}, 13, v{ST}',
                    f'v_bfe_u32 v{ST}, v{t}, 7, 1',
                    f'v_lshl_add_u32 v{LD}, v{ST}, 3, v{LD}']
        out += [f'v_and_b32 v{ST}, 0x30, v{t}',
                f'v_lshrrev_b32 v{t}, 9, v{t}',
                f'v_lshl_add_u32 v{ST}, v{t}, {7 if PST == 2 else 6}, v{ST}',
                f'v_and_b32 v{TG}, 1, v{TG}',
                f'v_lshl_add_u32 v{ST}, v{TG}, 3, v{ST}']
        return out

    def red_sel():
        return [f'v_or_b32_dpp v{SEL}, v{BSEL}, v{BSEL} row_ror:4 row_mask:0xf bank_mask:0xf',
                f'v_or_b32_dpp v{SEL + 1}, v{BSEL + 1}, v{BSEL + 1} row_ror:4 row_mask:0xf bank_mask:0xf',
                f'v_mov_b64 {vr(SEL + 2, 2)}, {vr(SEL, 2)}']

    def part_addr(t=11):
        if PST == 2:
            return [f'v_lshrrev_b32 v{PA}, 1, v{VS}',
                    f'v_bfe_u32 v{t}, v{VS}, 9, 1',
                    f'v_and_b32 v{PB}, 0xf8, v{PA}',
                    f'v_lshl_add_u32 v{PB}, v{t}, 2, v{PB}']
        return [f'v_bfe_u32 v{t}, v{VS}, 8, 1',
                f'v_and_b32 v{PB}, 0xf0, v{VS}',
                f'v_lshl_add_u32 v{PB}, v{t}, 3, v{PB}',
                f'v_bfe_u32 v{t}, v{VS}, 9, 1',
                f'v_lshl_add_u32 v{PB}, v{t}, 2, v{PB}']

    a(f'v_mov_b32 v{IDX}, 0x4444')
    a(f'v_mov_b32 v{t0}, 0xeeee')
    a(f'v_cndmask_b32 v{IDX}, v{IDX}, v{t0}, s[{sHF}:{sHF + 1}]')
    a(f'v_and_b32 v{t0}, 1, v{vL}')
    a(f'v_lshlrev_b32 v{t0}, 4, v{t0}')
    a(f'v_mov_b32 v{t1}, 0x3f80')
    a(f'v_lshlrev_b32 v{t1}, v{t0}, v{t1}')
    a(f'v_bfe_u32 v{t0}, v{vL}, 1, 2')
    a(f'v_bfe_u32 v{t2}, v{vL}, 4, 1')
    a(f'v_lshlrev_b32 v{t2}, 1, v{t2}')
    a(f'v_sub_u32 v{t0}, v{t0}, v{t2}')
    for d in range(2):
        a(f'v_cmp_eq_u32 vcc, {d}, v{t0}')
        a(f'v_cndmask_b32 v{BSEL + d}, 0, v{t1}, vcc')
    if not OPT.get('ainit'):
        emit(a, red_addr(t0))
        for j in range(4):
            a(f'v_mov_b32 v{Q0 + j}, -1')
        for b in range(2):
            for g in range(3):
                a(f's_add_u32 s{sT}, s{sP0}, s{sNW}')
                a(f's_add_u32 s{sT}, s{sT}, {g * 32768 + b * PBUF}')
                a(f'buffer_store_dwordx4 {vr(Q0, 4)}, v{VS}, {srd(S_WS)}, s{sT} offen sc1', tag='init')
        for img in (1, 2):
            a(f's_add_u32 s{sT}, s{sMST}, {img * 16384}')
            a(f's_cmp_eq_u32 s{sRED}, 0')
            a(f's_cselect_b32 s{sT}, {OOB}, s{sT}')
            a(f'buffer_store_dwordx2 {vr(Q0, 2)}, v{ST}, {srd(S_WS)}, s{sT} offen sc1', tag='init')
        a(f'v_mov_b32 v{t0}, 0')
        a(f'buffer_store_dword v{t0}, off, {srd(S_WS)}, s{sFLG} offset:8 sc1', tag='init')
    if PST == 2:
        a(f's_lshr_b32 s{sT}, s{sW36}, 1')
        a(f's_sub_u32 s{sP0}, s{sP0}, s{sT}')
    else:
        a(f's_add_u32 s{sP0}, s{sP0}, s{sNW}')
    a(f's_add_u32 s{sP1}, s{sP0}, 32768')
    if not OPT.get('ainit'):
        init_done(a, 'init', t0)
    Lodd, Lwd = a.newlabel('WODD'), a.newlabel('WDONE')
    a(f's_bitcmp1_b32 s{S_WAVE}, 0')
    a(f's_cbranch_scc1 {Lodd}')
    a.fork()
    weights(0)
    a(f's_branch {Lwd}')
    a.label(Lodd)
    a.rejoin()
    weights(1)
    a.label(Lwd)
    a('s_waitcnt lgkmcnt(0)')
    stamp(a, 2, vt=Q0)

    def need_flags(delta, fl):
        Lok, Lp = a.newlabel('FOK'), a.newlabel('FP')
        a(f's_add_u32 s{sT}, s{sS}, {delta}')
        a(f's_min_u32 s{sT}, s{sT}, 64')
        a.label(Lp)
        a(f's_cmp_ge_u32 s{sKNOWN}, s{sT}')
        a(f's_cbranch_scc1 {Lok}')
        a(f'buffer_load_dwordx2 {vr(fl, 2)}, off, {srd(S_WS)}, s{sFLG} sc1', tag='nc')
        a.raw('  s_waitcnt vmcnt(0)')
        a(f'v_min_u32 v{fl}, v{fl}, v{fl + 1}')
        a(f'v_readfirstlane_b32 s{sKNOWN}, v{fl}')
        a(f's_sub_i32 s{sBUD}, s{sBUD}, 1')
        a(f's_cmp_ge_i32 s{sBUD}, 0')
        a(f's_cbranch_scc1 {Lp}')
        a.label(Lok)

    PFO = 3072 + 128 - 1024

    def pf_addr(delta):
        return [f's_mul_i32 s{sT}, s{sNW}, 7',
                f's_add_u32 s{sPFK}, s{sKX}, s{sT}',
                f's_add_u32 s{sPFK}, s{sPFK}, {0x40000 * (delta - 1) - PFO}',
                f's_add_u32 s{sT}, s{sS}, {delta}',
                f's_cmp_ge_u32 s{sKNOWN}, s{sT}' if not OPT.get('nopf') else f's_cmp_ge_u32 s{sKNOWN}, 100',
                f's_cselect_b32 s{sPFK}, s{sPFK}, {OOB}']

    def rs_addr():
        return [f's_xor_b32 s{sT}, s{sP2}, {PBUF}', f's_add_u32 s{sT}, s{sT}, s{sNW}', f's_sub_u32 s{sT2}, s{sT}, 65536']

    def pf(ad, so):
        return ['s_mov_b32 exec_hi, 0', f'buffer_load_dword v{ad}, {srd(S_WS)}, s{so} offen offset:{PFO} sc1 lds', 's_mov_b32 exec_hi, -1']

    def zero(regs):
        return [f'v_mov_b64 {vr(r, 2)}, 0' for r in regs]

    QF = {(0, 0): R[0], (0, 1): R[1], (1, 0): M[3], (1, 1): M[5], (2, 0): M[7], (2, 1): XA}

    def qfrags():
        return [x for (s, cb), r in QF.items() for x in ring('Q', s, cb, r)]

    a(f'v_and_b32 v{t0}, 7, v{vL}')
    a(f'v_mul_u32_u24 v{t0}, 1152, v{t0}')
    a(f'v_lshrrev_b32 v{t1}, 3, v{vL}')
    a(f'v_lshl_add_u32 v{Q0}, v{t1}, 4, v{t0}')
    a('s_waitcnt lgkmcnt(0)')
    a(f's_lshl_b32 s{sT}, s{S_WAVE}, 8')
    a(f'buffer_load_dwordx4 {vr(M[0], 4)}, v{Q0}, {srd(S_M0)}, s{sT} offen')
    a(f'buffer_load_dwordx4 {vr(M[1], 4)}, v{Q0}, {srd(S_M0)}, s{sT} offen offset:128')
    a(f'buffer_load_dwordx4 {vr(M[2], 4)}, v{Q0}, {srd(S_M0)}, 0 offen offset:1024')
    emit(a, qfrags())
    poll_dbg(a, D_INIT, 32 if alone or OPT.get('ainit') else 256, Q1, sT)
    a(f'buffer_load_dword v{Q1}, off, {srd(S_DBG)}, 0 offset:{D_TICK0} sc1')
    a(f'v_readfirstlane_b32 s{sFAST}, v{Q1}')
    need_flags(1, Q1)
    emit(a, pf_addr(2))
    a(f's_add_u32 m0, s{sW36}, 1024')
    a(f's_mov_b32 s{sPFV}, {VB - KB - 2048}')
    emit(a, rs_addr())
    a('s_waitcnt vmcnt(0) lgkmcnt(0)')
    emit(a, zero(range(Q0, Q0 + 16, 2)))
    KI = 0 if OPT.get('rsp') == '2' else -1
    emit(a, [f'v_mov_b64 {vr(K0, 2)}, {KI}', f'v_mov_b64 {vr(K0 + 2, 2)}, {KI}'])
    a(f's_lshl_b32 s{sMA}, s{S_WAVE}, 11')
    a(f's_add_u32 s{sMA}, s{sMA}, s{sNW}')
    a(f's_add_u32 s{sMA}, s{sMA}, {MEM}')
    a(f's_add_u32 s{sMB}, s{sNW}, {MEM + 8192}')
    a('s_barrier')
    stamp(a, 3, vt=K1 + 2)
    a(f'v_mov_b64 {vr(K1 + 2, 2)}, 0')
    a(f'ds_write_b128 v{VS}, {vr(M[0], 4)}')
    a(f'ds_write_b128 v{VS}, {vr(M[1], 4)} offset:1024')
    Lend = a.newlabel('CEND')

    def cvt(d, x, y):
        return f'v_cvt_pk_bf16_f32 v{d}, v{x}, v{y}'

    def trm(b):
        return f'v_mfma_f32_16x16x16_bf16 {vr(b, 4)}, {vr(b, 2)}, {vr(BSEL, 2)}, 0'

    def m32(d, A, B, C='0'):
        return f'v_mfma_f32_16x16x32_bf16 {vr(d, 4)}, {vr(A, 4)}, {vr(B, 4)}, {C}'

    def m16(d, A, B):
        return f'v_mfma_f32_16x16x16_bf16 {vr(d, 4)}, {vr(A, 2)}, {vr(B, 2)}, {vr(d, 4)}'

    def add(d, x, y):
        return f'v_add_f32 v{d}, v{x}, v{y}'

    def swp(n, x, y):
        return f'v_permlane{n}_swap_b32 v{x}, v{y}'

    def st(txt):
        return txt + cst[0]

    def kmst(txt, w):
        o = OPT.get('km', '')
        if 'n' + w in o:
            return []
        return [txt + ('' if 'p' + w in o else ' sc1')]

    def steps():
        Lstep, Lgo, Lp, Lretry = (a.newlabel(x) for x in ('CSTEP', 'CGO', 'MP', 'MR'))
        a(f's_branch {Lgo}')
        QA, KA, VA = (Q0, Q1), (K0, K1), (Q1, XB)

        def S(m, s, cb, r=None):
            acc = {'Q': QA, 'K': KA, 'V': VA}[m][cb]
            return smf(acc, M[s], freg[(m, s, cb)] if r is None else r)

        a.label(Lstep)
        a.assume(vm=0, lgkm=0)
        tg = K1 + 3
        PPM, PPR = 0, 0

        def mloads():
            a(f'buffer_load_dwordx4 {vr(M[0], 4)}, v{VS}, {srd(S_WS)}, s{sMA2} offen sc1', tag='nc')
            a(f'buffer_load_dwordx4 {vr(M[1], 4)}, v{VS}, {srd(S_WS)}, s{sMA2} offen offset:1024 sc1', tag='nc')
            a(f'buffer_load_dwordx4 {vr(M[2], 4)}, v{VS}, {srd(S_WS)}, s{sMB2} offen sc1', tag='nc')
        emit(a, zero((Q0, Q0 + 2, K1, K1 + 2)))
        emit(a, [f'v_mov_b64 {vr(K0, 2)}, {KI}', f'v_mov_b64 {vr(K0 + 2, 2)}, {KI}'])
        a.label(Lp)
        pstamp(a, 'lastpoll')
        mloads()
        a(f's_sub_i32 s{sBUD}, s{sBUD}, 1')
        a(f's_waitcnt vmcnt(2) lgkmcnt(0)')
        a(f'v_max3_u32 v{tg}, v{M[0]}, v{M[0] + 1}, v{M[0] + 2}')
        pstamp(a, 'm0')
        a(f'v_max_u32 v{tg}, v{M[0] + 3}, v{tg}')
        a(f'ds_write_b128 v{VS}, {vr(M[0], 4)}', tag='mw')
        emit(a, zero((Q1, Q1 + 2)))
        a(f's_waitcnt vmcnt(1)')
        a(f'v_max3_u32 v{tg}, v{M[1]}, v{M[1] + 1}, v{tg}')
        a(f'v_max3_u32 v{tg}, v{M[1] + 2}, v{M[1] + 3}, v{tg}')
        a(f'ds_write_b128 v{VS}, {vr(M[1], 4)} offset:1024', tag='mw')
        a(f's_waitcnt vmcnt(0)')
        a(f'v_max3_u32 v{tg}, v{M[2]}, v{M[2] + 1}, v{tg}')
        a(f'v_max3_u32 v{tg}, v{M[2] + 2}, v{M[2] + 3}, v{tg}')
        a(f'v_cmp_eq_u32 vcc, -1, v{tg}')
        a(f's_cbranch_vccnz {Lretry}')
        a.label(Lgo)
        pstamp(a, 'go')
        rk = ring('K', 2, 0, R[0]) + ring('K', 2, 1, R[1])
        PV_, PA_ = M[7], M[7] + 1
        rs = [[st(f'buffer_store_dwordx4 {vr(K0, 4)}, v{VS}, {srd(S_WS)}, s{sT2} offen'), f's_add_u32 s{sT2}, s{sT2}, 32768'],
              [st(f'buffer_store_dwordx4 {vr(K0, 4)}, v{VS}, {srd(S_WS)}, s{sT2} offen')],
              ['s_mov_b64 exec, 0xffff', st(f'buffer_store_dwordx4 {vr(K0, 4)}, v{VS}, {srd(S_WS)}, s{sT} offen'), 's_mov_b64 exec, -1']]
        RSP = int(OPT.get('rsp', 0))
        rs2 = [[], [], []]
        zk = zero((K0, K0 + 2))
        if RSP == 1:
            rs, rs2 = rs2, rs
        if RSP == 2:
            rs = rs2
            zk = []
        emit(a, [S('Q', 0, 0, R[0]), 's_mov_b64 exec, -1', f'v_mov_b32 v{tg}, 0', rs[0],
                 S('Q', 0, 1, R[1]), rk[0],
                 S('Q', 1, 0, M[3]), rk[1], f'v_add_u32 v{M[4]}, s{sD1}, v{VS}', rs[1],
                 S('Q', 1, 1, M[5]), rk[2], f'v_add_u32 v{M[6]}, s{sD2}, v{VS}',
                 S('Q', 2, 0, M[7]), rk[3], f'v_add_u32 v{M[8]}, s{sD3}, v{VS}', rs[2],
                 S('Q', 2, 1, XA), f'v_lshlrev_b32 v{PA_}, 3, v{VS}', zk if RSP != 1 else []])
        pstamp(a, 'preb1')
        a.waitfor('mw')
        a('s_barrier')
        pstamp(a, 'b1')
        rd = []
        for i in (3, 5, 7):
            rd.append(f'ds_read_b128 {vr(M[i], 4)}, v{M[i + 1]}')
            rd.append(f'ds_read_b128 {vr(M[i + 1], 4)}, v{M[i + 1]} offset:1024')
        rk = ring('K', 3, 0, R[0]) + ring('K', 3, 1, R[1])
        pk = pf(PA_, sPFK)
        if RSP != 1:
            emit(a, [rd[0], S('K', 0, 1), rd[1], f'buffer_load_dwordx4 {vr(XA, 4)}, v{VS}, {srd(S_WS)}, s{sKX} offen sc1',
                     S('K', 0, 0), rd[2], f'v_bfe_u32 v{PV_}, v{VS}, 8, 1',
                     S('K', 1, 0), rd[3], f'buffer_load_dwordx4 {vr(XB, 4)}, v{VS}, {srd(S_WS)}, s{sKX} offen offset:1024 sc1',
                     S('K', 1, 1), f'v_mad_u32_u24 v{PA_}, v{PV_}, s{sPFV}, v{PA_}', pk[0],
                     S('K', 2, 0, R[0]), pk[1], pk[2], f'v_mov_b32 v{PV_}, s{sS}',
                     S('K', 2, 1, R[1]),
                     f'buffer_store_dword v{PV_}, off, {srd(S_WS)}, s{sFW} offset:8 sc1',
                     S('Q', 3, 0), rd[4], S('Q', 3, 1), rd[5],
                     S('Q', 4, 0), rk[0], S('Q', 4, 1), rk[1], S('Q', 5, 0), rk[2], S('Q', 5, 1), rk[3]])
            for s in range(6, 9):
                emit(a, [S('Q', s, 0), S('Q', s, 1)])
        else:
            emit(a, [rd[0], S('K', 0, 1), rd[1], f'buffer_load_dwordx4 {vr(XA, 4)}, v{VS}, {srd(S_WS)}, s{sKX} offen sc1',
                     S('K', 1, 1), rd[2], f'v_bfe_u32 v{PV_}, v{VS}, 8, 1',
                     f'buffer_load_dwordx4 {vr(XB, 4)}, v{VS}, {srd(S_WS)}, s{sKX} offen offset:1024 sc1',
                     S('K', 2, 1, R[1]), rd[3], f'v_mad_u32_u24 v{PA_}, v{PV_}, s{sPFV}, v{PA_}', pk[0],
                     S('Q', 3, 0), pk[1], pk[2], f'v_mov_b32 v{PV_}, s{sS}',
                     S('Q', 3, 1),
                     f'buffer_store_dword v{PV_}, off, {srd(S_WS)}, s{sFW} offset:8 sc1',
                     S('Q', 4, 0), rd[4], S('Q', 4, 1), rd[5], rs2[0],
                     S('Q', 5, 0), rk[2], S('Q', 5, 1), rk[3], rs2[1],
                     S('Q', 6, 0), S('Q', 6, 1), rs2[2], S('Q', 7, 0), zk[0], S('Q', 7, 1), zk[1],
                     S('K', 2, 0, R[0]), S('K', 0, 0), rk[0], S('K', 1, 0), rk[1],
                     S('Q', 8, 0), S('Q', 8, 1)])
        pstamp(a, 'Q')
        cx = [f'v_cndmask_b32 v{XA + r}, v{XA + r}, v{XB + r}, s[{sHF}:{sHF + 1}]' for r in range(4)]
        PX, PM, mx, tm = R[0], R[0] + 4, R[0] + 6, R[0] + 7
        FA, FB, FC = R[1], M[0], M[2]
        MB = M[4]
        rdx = [f'ds_read_b128 {vr(R[w >> 1] + 4 * (w & 1), 4)}, v{R[w >> 1]} offset:{(w & 1) * REG + 2048}' for w in (1, 0, 3, 2)]
        ax = [add(PX + r, PX + r, PX + 4 + r) for r in range(4)] + [add(FA + r, FA + r, FA + 4 + r) for r in range(4)] + \
             [add(PX + r, PX + r, FA + r) for r in range(4)]
        AM = tm
        rdm = [f'ds_read2st64_b64 {vr(d, 4)}, v{AM} offset0:{6 + 160 * u} offset1:{86 + 160 * u}' for u, d in enumerate((Q0, MB))]
        fb = {(5, 0): FA, (5, 1): FB, (6, 0): FC, (6, 1): FA, (7, 0): FB, (7, 1): FC, (8, 0): FA, (8, 1): FB}
        rv = {k: ring('V', k[0], k[1], r) for k, r in fb.items()}

        def SV(s, cb):
            return S('V', s, cb, fb.get((s, cb)))
        VX1 = K1
        emit(a, [S('K', 3, 0, R[0]), cvt(Q0, Q0, Q0 + 1), cvt(Q0 + 1, Q0 + 2, Q0 + 3),
                 S('K', 3, 1, R[1]), cvt(Q1, Q1, Q1 + 1), cvt(Q1 + 1, Q1 + 2, Q1 + 3),
                 trm(Q0), f'v_and_b32 v{R[0]}, 0x3ff, v{VS}',
                 trm(Q1), f'v_add_u32 v{R[1]}, {2 * REG}, v{R[0]}',
                 S('K', 4, 0), cvt(Q0, Q0, Q0 + 1), cvt(Q0 + 1, Q0 + 2, Q0 + 3),
                 S('K', 5, 0), cvt(Q0 + 2, Q1, Q1 + 1), cvt(Q0 + 3, Q1 + 2, Q1 + 3),
                 S('K', 6, 0), zero((Q1,)), '@kx0',
                 m32(XA, XA, Q0), zero((Q1 + 2,)),
                 m32(XB, XB, Q0), '@kx1',
                 S('K', 7, 0),
                 S('K', 8, 0), cx[0], cx[1],
                 S('K', 4, 1), cx[2], cx[3],
                 S('K', 5, 1), (f'ds_write_b128 v{VS}, {vr(XA, 4)} offset:2048', 'xw'), cvt(K0, K0, K0 + 1),
                 S('K', 6, 1), cvt(K0 + 1, K0 + 2, K0 + 3), zero((XB,)),
                 S('K', 7, 1), zero((XB + 2,)),
                 trm(K0), f'buffer_load_dwordx4 {vr(XA, 4)}, v{VS}, {srd(S_WS)}, s{sVX} offen sc1',
                 S('K', 8, 1), '@K',
                 SV(0, 0), cvt(K0, K0, K0 + 1), ('waitfor', 'xw'), 's_barrier', '@bx',
                 rdx[0], cvt(K1, K1, K1 + 1), cvt(K1 + 1, K1 + 2, K1 + 3), rdx[1], rdx[2],
                 trm(K1), rdx[3], cvt(K0 + 1, K0 + 2, K0 + 3),
                 SV(0, 1),
                 SV(1, 0), cvt(K0 + 2, K1, K1 + 1), cvt(K0 + 3, K1 + 2, K1 + 3),
                 SV(1, 1),
                 m32(Q0, K0, Q0), f'buffer_load_dwordx4 {vr(VX1, 4)}, v{VS}, {srd(S_WS)}, s{sVX} offen offset:1024 sc1',
                 SV(2, 0), ax[0], ax[1],
                 SV(2, 1), (f'ds_write_b128 v{VS}, {vr(Q0, 4)} offset:3072', 'mmw'), '@mmw', ax[2], ax[3],
                 rv[5, 1], ax[4:8],
                 SV(3, 0), ax[8], ax[9],
                 SV(3, 1), ax[10], ax[11], rv[5, 0],
                 SV(4, 0), f'v_bfe_u32 v{mx}, v{VS}, 7, 1', f'v_and_b32 v{AM}, 0x3ff, v{VS}',
                 SV(4, 1), f'v_mad_i32_i24 v{AM}, v{mx}, s{sM120}, v{AM}', rv[6, 0]])
        pstamp(a, 'preb2')
        a.waitfor('mmw')
        a('s_barrier')
        pstamp(a, 'b2')
        ONES, HALF, LS = MB, Q0, 36
        blk = {0: 16, 1: 20, 2: 24, 3: 28, 8: 32}
        AP = (XA, R[0], R[0] + 4, R[1])
        AS = (R[1] + 4, XB)
        mvc = [f'v_mov_b64 {vr(ONES, 2)}, s[{sONE}:{sONE + 1}]', f'v_mov_b64 {vr(ONES + 2, 2)}, s[{sONE}:{sONE + 1}]',
               f'v_mov_b64 {vr(HALF, 2)}, s[{sHALF}:{sHALF + 1}]']
        emit(a, [rdm[0], rdm[1],
                 SV(5, 1), kmst(f'buffer_store_dwordx4 {vr(K0, 4)}, v{VS}, {srd(S_WS)}, s{sKM} offen', 'k'),
                 SV(5, 0), rv[7, 0][0], f'v_max3_f32 v{mx}, v{PX}, v{PX + 1}, v{PX + 2}',
                 SV(6, 0), rv[6, 1][0], rv[6, 1][1],
                 add(PM, Q0, Q0 + 2), add(PM + 1, Q0 + 1, Q0 + 3), f'v_max_f32 v{mx}, v{mx}, v{PX + 3}',
                 add(PM, PM, MB), add(PM + 1, PM + 1, MB + 1), rv[7, 0][1], add(PM, PM, MB + 2), add(PM + 1, PM + 1, MB + 3), '@sum',
                 f'v_max3_f32 v{mx}, v{PM}, v{PM + 1}, v{mx}',
                 rv[7, 1][0], rv[7, 1][1],
                 f'v_max_f32_dpp v{mx}, v{mx}, v{mx} row_ror:8 row_mask:0xf bank_mask:0xf',
                 f'v_mov_b32 v{tm}, v{mx}',
                 SV(6, 1),
                 swp(16, mx, tm), f'v_max_f32 v{mx}, v{mx}, v{tm}', f'v_mov_b32 v{tm}, v{mx}',
                 rv[8, 0][0], rv[8, 0][1],
                 swp(32, mx, tm), f'v_max_f32 v{mx}, v{mx}, v{tm}',
                 SV(7, 0),
                 f'v_mul_f32 v{mx}, s{sC}, v{mx}', rv[8, 1][0], rv[8, 1][1], '@max'])
        fm = [f'v_fma_f32 v{r}, v{r}, s{sC}, -v{mx}' for r in range(PX, PX + 6)]
        ex = [f'v_exp_f32 v{r}, v{r}' for r in range(PX, PX + 6)]

        def dpp(d, s_, bank=0xf):
            return f'v_mov_b32_dpp v{d}, v{s_} row_ror:8 row_mask:0xf bank_mask:{hex(bank)}'

        def mul(r):
            return f'v_mul_f32 v{r}, v{LS}, v{r}'
        TA = 8
        emit(a, [fm, SV(7, 1), ex[0], ex[1], ex[2],
                 SV(8, 0), ex[3], SV(8, 1), ex[4], ex[5], cvt(PX, PX, PX + 1), cvt(PX + 1, PX + 2, PX + 3), mvc[0], mvc[1], cvt(PM, PM, PM + 1),
                 dpp(PX + 2, PX), dpp(PX + 3, PX + 1), dpp(PM + 1, PM), mvc[2], '@P',
                 m32(LS, ONES, PX), cvt(Q1, Q1, Q1 + 1), cvt(Q1 + 1, Q1 + 2, Q1 + 3),
                 m32(XA, XA, PX), cvt(Q1 + 2, XB, XB + 1), cvt(Q1 + 3, XB + 2, XB + 3),
                 m32(VX1, VX1, PX), f'buffer_load_dwordx4 off, {srd(S_WS)}, s{sFLG} sc1 lds', f'v_and_b32 v{TA}, 0xffffff7f, v{VS}',
                 m16(LS, HALF, PM), f'v_add_u32 v{AP[3]}, s{sD3}, v{TA}', zero((16,)),
                 m16(XA, Q1, PM), f'v_add_u32 v{AP[1]}, s{sD1}, v{TA}', zero((18,)),
                 m16(VX1, Q1 + 2, PM), kmst(f'buffer_store_dwordx4 {vr(Q1, 4)}, v{VS}, {srd(S_WS)}, s{sKM} offen offset:1024', 'v'),
                 f'v_rcp_f32 v{LS}, v{LS}', f'v_add_u32 v{AP[2]}, s{sD2}, v{TA}',
                 f'v_cndmask_b32 v{AS[0]}, v{TA}, v{AP[1]}, s[{sHF}:{sHF + 1}]', '@PV',
                 [mul(XA + r) for r in range(4)], cvt(XA, XA, XA + 1), cvt(XA + 1, XA + 2, XA + 3),
                 [mul(VX1 + r) for r in range(4)], cvt(XA + 2, VX1, VX1 + 1), cvt(XA + 3, VX1 + 2, VX1 + 3),
                 (f'ds_write_b128 v{VS}, {vr(XA, 4)}', 'ow'), '@ow',
                 f's_cmp_eq_u32 s{sS}, {OPT.get("last", 63)}', f's_cbranch_scc1 {Lend}',
                 f'v_cndmask_b32 v{AS[1]}, v{AP[2]}, v{AP[3]}, s[{sHF}:{sHF + 1}]',
                 [dpp(XA + r, XA + r, 0xc) for r in range(4)], zero((20, 22, 24, 26, 28, 30, 32, 34)), part_addr()])
        pstamp(a, 'preb3')
        a.waitfor('ow')
        a('s_barrier')
        pstamp(a, 'b3')
        ro = [f'ds_read_b128 {vr(r, 4)}, v{r}' for r in AP[1:] + AS]
        emit(a, [ro[0], smf(blk[0], XA, ofrag(0, 0)), ro[1], smf(blk[1], XA, ofrag(1, 0)), ro[2],
                 smf(blk[2], XA, ofrag(2, 0)), ro[3], ro[4], smf(blk[3], XA, ofrag(3, 0))])
        pstamp(a, 'rdw')

        def fin(p):
            b = blk[p]
            if PST == 2:
                return [cvt(b, b, b + 1), cvt(b + 1, b + 2, b + 3),
                        st(f'buffer_store_dwordx2 {vr(b, 2)}, v{PA}, {srd(S_WS)}, s{(sP0, sP1)[p >> 1]} offen offset:{512 * (p & 1)}')]
            if not p & 1:
                return [cvt(b, b, b + 1), cvt(b + 1, b + 2, b + 3)]
            x = b - 4
            return [cvt(x + 2, b, b + 1), cvt(x + 3, b + 2, b + 3), swp(16, x, x + 2), swp(16, x + 1, x + 3),
                    st(f'buffer_store_dwordx4 {vr(x, 4)}, v{VS}, {srd(S_WS)}, s{(sP0, sP1)[p >> 1]} offen')]
        b8 = blk[8]
        f8 = [swp(32, b8, b8 + 2), swp(32, b8 + 1, b8 + 3), add(b8, b8, b8 + 2), add(b8 + 1, b8 + 1, b8 + 3),
              cvt(b8, b8, b8 + 1), st(f'buffer_store_dword v{b8}, v{PB}, {srd(S_WS)}, s{sP2} offen')]
        mf = [smf(blk[0], AP[t], ofrag(0, t)) for t in (1, 2, 3)] + [smf(b8, AS[u], ofrag(8, u)) for u in range(2)]
        mf += [smf(blk[p], AP[t], ofrag(p, t)) for p in (1, 2, 3) for t in (1, 2, 3)]
        ra = red_addr() + red_sel()
        f0, f1, f2 = fin(0), fin(1), fin(2)
        sh = {4: f0[:1], 5: f0[1:], 6: f8[:1], 7: f8[1:2], 8: f8[2:4], 9: f8[4:] + f1[:1], 10: f1[1:], 12: f2[:1], 13: f2[1:]}
        for i, x in enumerate(mf):
            emit(a, [x] + sh.get(i, []))
        pstamp(a, 'Wo')
        emit(a, fin(3))
        pstamp(a, 'st')
        emit(a, ra)
        a(f's_add_u32 s{sT}, s{sS}, 1')
        a(f's_and_b32 s{sT}, s{sT}, 3')
        a(f's_lshl_b32 s{sT}, s{sT}, 14')
        a(f's_add_u32 s{sMA2}, s{sMA}, s{sT}')
        a(f's_add_u32 s{sMB2}, s{sMB}, s{sT}')
        a(f's_add_u32 s{sMS1}, s{sMST}, s{sT}')
        a(f's_xor_b32 s{sT}, s{sT}, 0x8000')
        a(f's_add_u32 s{sMS2}, s{sMST}, s{sT}')
        Lnr, Lj = a.newlabel('NR'), a.newlabel('NJ')

        def take_flags():
            a(f'ds_read_b64 v[4:5], v{VS} offset:1024')
            a('v_min_u32 v4, v4, v5')
            a(f'v_readfirstlane_b32 s{sKNOWN}, v4')
        a(f's_cmp_eq_u32 s{sRED}, 0')
        a(f's_cbranch_scc1 {Lnr}')
        nq = int(OPT.get('nq', 12))
        qf = qfrags()
        emit(a, qf[:nq])
        if OPT.get('own', '1') == '1':
            a('s_waitcnt vmcnt(0)')
        DR = [4, 8, 12, Q1]

        def ploads():
            for e in range(8):
                a(f'buffer_load_dwordx2 {vr(DR[e >> 1] + 2 * (e & 1), 2)}, v{LD}, {srd(S_WS)}, s{sRL0 if e < 4 else sRL1} offen offset:{(e & 3) * 1024} sc1', tag='nc')
        Lr, Lr2, Lro, Lrr = (a.newlabel(x) for x in ('RP', 'RQ', 'RO', 'RR'))
        pstamp(a, 'own')
        a.assume(vm=0)
        for _ in range(PPR + 1):
            ploads()
            if _ == 0:
                emit(a, qf[nq:])
        pstamp(a, 'ri')
        a.label(Lr2)
        a(f's_sub_i32 s{sBUD}, s{sBUD}, 1')
        for it in range(4):
            d = DR[it]
            a(f's_waitcnt vmcnt({8 * PPR + 7 - 2 * it})')
            a(f'v_max_u32 v{TG}, v{d}, v{d + 1}' if it == 0 else f'v_max3_u32 v{TG}, v{d}, v{d + 1}, v{TG}')
            if it == 0:
                pstamp(a, 'r0')
            a(f's_waitcnt vmcnt({8 * PPR + 6 - 2 * it})')
            a(f'v_max3_u32 v{TG}, v{d + 2}, v{d + 3}, v{TG}')
            a(m32(RACC, d, SEL, '0' if it == 0 else vr(RACC, 4)))
        pstamp(a, 'r7')
        a(f'v_cmp_eq_u32 vcc, -1, v{TG}')
        a(f's_cbranch_vccnz {Lrr}')
        a.label(Lro)
        a('s_mov_b64 exec, -1')
        a(f'v_mov_b64 {vr(TG, 2)}, -1')
        a(cvt(RACC, RACC, RACC + 1))
        a(cvt(RACC + 1, RACC + 2, RACC + 3))
        fast_store(f'buffer_store_dwordx2 {vr(RACC, 2)}, v{ST}, {srd(S_WS)}, s{sMS1} offen')
        pstamp(a, 'red')
        fast_store(f'buffer_store_dwordx2 {vr(TG, 2)}, v{ST}, {srd(S_WS)}, s{sMS2} offen')
        take_flags()
        a.label(Lj)
        pstamp(a, 'j')
        acc_step(a)
        emit(a, pf_addr(3))
        for r in (sP0, sP1, sP2, sRL0, sRL1):
            a(f's_xor_b32 s{r}, s{r}, {PBUF}')
        emit(a, rs_addr())
        a(f's_add_u32 s{sVX}, s{sVX}, 0x40000')
        a(f's_add_u32 s{sKM}, s{sKM}, 0x40000')
        a(f's_add_u32 s{sKX}, s{sKX}, 0x40000')
        a(f's_add_u32 s{sS}, s{sS}, 1')
        a('s_barrier')
        a(f's_branch {Lstep}')

        a.label(Lnr)
        a.assume(vm=0, lgkm=0)
        emit(a, qf)
        a('s_waitcnt vmcnt(6)')
        take_flags()
        a(f's_cmp_lg_u32 s{S_WAVE}, 3')
        a(f's_cbranch_scc1 {Lj}')
        if RSP == 2:
            emit(a, ['v_mov_b64 v[4:5], -1', 'v_mov_b64 v[6:7], -1',
                     f's_xor_b32 s{sT}, s{sP2}, {PBUF}', f's_add_u32 s{sT}, s{sT}, s{sNW}', f's_sub_u32 s{sT}, s{sT}, {11 * 32768}',
                     f'v_bfe_u32 v8, v{VS}, 8, 2', f'v_mul_u32_u24 v8, {98304 - 256}, v8', f'v_add_u32 v8, v8, v{VS}'])
            for w in range(4):
                for g in range(2):
                    a(f's_add_u32 s{sT2}, s{sT}, {(3 * w + g) * 32768}')
                    a(st(f'buffer_store_dwordx4 v[4:7], v{VS}, {srd(S_WS)}, s{sT2} offen'), tag='nc')
            a(f's_add_u32 s{sT2}, s{sT}, 65536')
            a(st(f'buffer_store_dwordx4 v[4:7], v8, {srd(S_WS)}, s{sT2} offen'), tag='nc')
        need_flags(2, 14)
        a(f's_branch {Lj}')

        a.label(Lretry)
        a(f's_cmp_lt_i32 s{sBUD}, 0')
        a(f's_cbranch_scc1 {Lgo}')
        if OPT.get('mask', '1') == '1':
            a('s_mov_b64 exec, vcc')
        a(f's_branch {Lp}')

        a.label(Lrr)
        a(f's_cmp_lt_i32 s{sBUD}, 0')
        a(f's_cbranch_scc1 {Lro}')
        if OPT.get('mask', '1') == '1':
            a('s_mov_b64 exec, vcc')
        pstamp(a, 'rr')
        ploads()
        a(f's_branch {Lr2}')

    acc_init(a)
    sM120 = sW36
    a(f's_mov_b32 s{sM120}, -120')
    if alone:
        cst[0] = OPT.get('cst', '')
        steps()
    else:
        Lslow = a.newlabel('CSLOW')
        a(f's_cmp_lt_u32 s{sFAST}, 32')
        a(f's_cbranch_scc1 {Lslow}')
        steps()
        a.label(Lslow)
        cst[0] = ' sc1'
        nois = OPT.get('nois')
        OPT['nois'] = '1'
        steps()
        OPT['nois'] = nois
    a.label(Lend)
    a('s_waitcnt vmcnt(0)')
    a('s_barrier')
    a(f'v_mov_b32 v{M[7]}, 64')
    a(f'buffer_store_dword v{M[7]}, off, {srd(S_WS)}, s{sFW} offset:8 sc1', tag='nc')
    stamp(a, 4)
    stamp(a, 5, real=True)
    if DIAG_ON[0]:
        a(f'v_mov_b32 v4, s{sBUD}')
        a(f'buffer_store_dword v4, off, {srd(S_WS)}, s98 offset:48')
    pstamp_dump(a)
```

```python
from common import *

REG = 40960
SC = 147456
XC = 81920
SEGA = 4 * 576 * 128
NSL = 12


def gen_g(a, s_idx):
    sS, sH, sO, sO2, sT, sT2, sBUD, sRA, sRB, sW36, sONE, sODD = range(56, 68)
    sG = [68, 69, 70]
    sHS, sD = 68, 71
    VS, vB, vB2, vW, vOUT, vSW, vSR, TG, t0, t1, t2, vXW, vXR, vWS = range(14)
    vST = vSW
    MEAN, RS2 = 14, 15
    SU = [16, 17, 18, 19]
    PT = 20
    H = 32
    CS, ACC = (72, 88), (104, 120)
    XP = 136
    RING, NR = 144, 6
    PK, SEN = (168, 172), 176
    H2 = 180
    TU = 180
    W0, W1 = 256, 400

    stamp(a, 0, real=True)
    a(f's_mov_b32 s{sBUD}, {BUDGET}')
    a(f's_mov_b32 s{sONE}, 0x3f803f80')
    a(f's_and_b32 s{sODD}, s{S_WAVE}, 1')
    a(f's_mul_i32 s{sW36}, s{S_WAVE}, {REG}')
    a(f's_mul_i32 s{sT}, s{s_idx}, {12 * 128}')
    a(f's_add_u32 s{sT}, s{sT}, {ACT}')
    a(f's_lshl_b32 s{sO}, s{S_WAVE}, 8')
    a(f's_add_u32 s{sO}, s{sO}, s{sT}')
    a(f's_lshr_b32 s{sO2}, s{S_WAVE}, 1')
    a(f's_lshl_b32 s{sO2}, s{sO2}, 8')
    a(f's_add_u32 s{sO2}, s{sO2}, s{sT}')
    a(f's_lshl_b32 s{sT}, s{sODD}, 3')
    a(f's_add_u32 s{sO2}, s{sO2}, s{sT}')
    a(f's_add_u32 s{sO2}, s{sO2}, 1024')
    a(f'v_and_b32 v{t0}, 31, v0')
    a(f'v_lshrrev_b32 v{t2}, 5, v0')
    a(f'v_lshrrev_b32 v{vOUT}, 3, v{t0}')
    a(f'v_mul_u32_u24 v{vOUT}, {576 * 128}, v{vOUT}')
    a(f'v_lshl_add_u32 v{vOUT}, v{t2}, 7, v{vOUT}')
    a(f'v_and_b32 v{t2}, 7, v0')
    a(f'v_lshl_add_u32 v{vOUT}, v{t2}, 4, v{vOUT}')
    for j in range(4):
        a(f'v_mov_b32 v{SEN + j}, -1')
    if 'G' in OPT.get('late', 'GD'):
        wait_init(a, t0, sT)
    vWD, vA = 16, 17
    a(f'v_lshrrev_b32 v{t0}, 1, v0')
    a(f'v_mul_u32_u24 v{vWD}, 9216, v{t0}')
    a(f'v_and_b32 v{t0}, 1, v0')
    a(f'v_lshl_add_u32 v{vWD}, v{t0}, 4, v{vWD}')
    a(f's_mul_i32 s{sT}, s{s_idx}, 192')
    a(f's_mul_i32 s{sT2}, s{sODD}, {288 * 9216}')
    a(f's_add_u32 s{sRA}, s{sT}, s{sT2}')
    a(f's_sub_u32 s{sRB}, s{sT}, s{sT2}')

    def dma(n):
        if n < 18:
            a(f's_lshl_b32 s{sT}, s{S_WAVE}, 5')
            a(f's_add_u32 s{sT}, s{sT}, s{sRA if n < 9 else sRB}')
            a(f's_add_u32 s{sT}, s{sT}, {n * 32 * 9216}')
        else:
            a(f's_lshr_b32 s{sT}, s{S_WAVE}, 1')
            a(f's_lshl_b32 s{sT}, s{sT}, 5')
            a(f's_add_u32 s{sT}, s{sT}, s{sRA}')
            a(f's_add_u32 s{sT}, s{sT}, {(n - 18) * 32 * 9216 + 128}')
        for l, sw in enumerate((S_WG, S_WU)):
            a(f's_add_u32 m0, s{sW36}, {(n % NSL) * 2048 + l * 1024}')
            a(f'buffer_load_dwordx4 v{vWD}, {srd(sw)}, s{sT} offen lds', tag=f'w{n}')

    for n in range(NSL):
        dma(n)
    a(f'v_lshrrev_b32 v{t0}, 5, v0')
    a(f'v_lshlrev_b32 v{vA}, 8, v{t0}')
    a(f'v_bfe_u32 v{t1}, v0, 4, 1')
    a(f'v_lshl_add_u32 v{vA}, v{t1}, 10, v{vA}')
    a(f'v_and_b32 v{t2}, 15, v0')
    a(f'v_lshl_add_u32 v{vA}, v{t2}, 3, v{vA}')
    a(f'v_add_u32 v{vA}, s{sW36}, v{vA}')
    for n in range(27):
        if n == 18:
            a(f's_lshl_b32 s{sT}, s{sODD}, 4')
            a(f'v_xor_b32 v{vA}, s{sT}, v{vA}')
        a.waitfor(f'w{n}')
        for q in range(4):
            dst = (W0 + 8 * n if n < 18 else W1 + 8 * (n - 18)) + 2 * q
            a(f'ds_read_b64_tr_b16 {vr(dst, 2)}, v{vA} offset:{(n % NSL) * 2048 + (q >> 1) * 512 + (q & 1) * 128}', tag=f'c{n}')
        if n + NSL < 27:
            a.waitfor(f'c{n}')
            dma(n + NSL)
    for j in range(4):
        a(f'v_mov_b32 v{PK[0] + j}, s{sONE}')
    for t in range(36):
        a(f'v_mfma_f32_32x32x16_bf16 {vr(CS[0], 16)}, {vr(W0 + 4 * t, 4)}, {vr(PK[0], 4)}, {"0" if t == 0 else vr(CS[0], 16)}')
        if t < 18:
            a(f'v_mfma_f32_32x32x16_bf16 {vr(CS[1], 16)}, {vr(W1 + 4 * t, 4)}, {vr(PK[0], 4)}, {"0" if t == 0 else vr(CS[1], 16)}')
    a(f'v_lshlrev_b32 v{VS}, 4, v0')
    a(f's_mul_i32 s{sT}, s{sODD}, {18 * 1024}')
    a(f'v_add_u32 v{vB}, s{sT}, v{VS}')
    a(f's_xor_b32 s{sT}, s{sT}, {18 * 1024}')
    a(f'v_add_u32 v{vB2}, s{sT}, v{VS}')
    a(f's_mul_i32 s{sT}, s{S_WAVE}, 9216')
    a(f'v_add_u32 v{vW}, s{sT}, v{VS}')
    a(f's_add_u32 s{sH}, s{sT}, {HB}')
    a(f's_lshl_b32 s{sT}, s{S_WAVE}, 10')
    a(f's_add_u32 s{sT}, s{sT}, 36864')
    a(f'v_add_u32 v{vWS}, s{sT}, v{VS}')
    a(f's_add_u32 s{sHS}, s{sT}, {HB}')
    a(f's_cmp_eq_u32 s{S_WAVE}, 3')
    a(f's_cselect_b32 s{sHS}, 0x10000000, s{sHS}')
    a(f'v_mov_b32 v{vST}, v{VS}')
    a(f's_mov_b32 s{sD}, {HSEG}')
    a(f's_lshl_b32 s{sT}, s{S_WAVE}, 11')
    a(f's_add_u32 s{sT}, s{sT}, {XC}')
    a(f'v_add_u32 v{vXW}, s{sT}, v{VS}')
    a(f'v_xor_b32 v{vXR}, 2048, v{vXW}')
    a(f's_mov_b32 s{sS}, 0')
    a('s_waitcnt lgkmcnt(0)')
    a('s_barrier')

    def xw(r):
        return [(f'ds_write_b128 v{vXW}, {vr(r + 4 + 8 * q, 4)} offset:{1024 * q}', 'sw') for q in range(2)]

    def xr(r):
        return [f'ds_read_b128 {vr(XP + 4 * q, 4)}, v{vXR} offset:{1024 * q}' for q in range(2)], \
               [f'v_add_f32 v{r + 8 * (j >> 2) + (j & 3)}, v{r + 8 * (j >> 2) + (j & 3)}, v{XP + j}' for j in range(8)]
    emit(a, xw(CS[1]))
    a.waitfor('sw')
    a('s_barrier')
    emit(a, list(xr(CS[1])))
    stamp(a, 1, real=True, vt=PT)
    stamp(a, 3, vt=PT)
    wait_init(a, t0, sT)

    def issue():
        out = [f's_add_u32 s{sG[g]}, s{sH}, {g * 4096}' for g in (1, 2)]
        for j in range(9):
            out.append((f'buffer_load_dwordx4 {vr(H + 4 * j, 4)}, v{VS}, {srd(S_WS)}, s{sG[j // 4] if j >= 4 else sH} offen offset:{(j & 3) * 1024} sc1', 'nc'))
        out.append((f'buffer_load_dwordx4 {vr(H + 36, 4)}, v{VS}, {srd(S_WS)}, s{sHS} offen sc1', 'nc'))
        return out

    def check(ny):
        for j in range(10):
            r = H + 4 * j
            a(f's_waitcnt vmcnt({9 - j + ny})')
            a(f'ds_write_b128 v{vW if j < 9 else vWS}, {vr(r, 4)} offset:{(j % 9) * 1024}', tag='hw')
            if j == 0:
                a(f'v_max3_u32 v{TG}, v{r}, v{r + 1}, v{r + 2}')
                a(f'v_max_u32 v{TG}, v{r + 3}, v{TG}')
            else:
                a(f'v_max3_u32 v{TG}, v{r}, v{r + 1}, v{TG}')
                a(f'v_max3_u32 v{TG}, v{r + 2}, v{r + 3}, v{TG}')
        a(f'v_cmp_eq_u32 vcc, -1, v{TG}')

    Lretry, Ltop, Lok, Lchk = (a.newlabel(x) for x in ('GR', 'GT', 'GK', 'GC'))
    a('s_waitcnt vmcnt(0) lgkmcnt(0)')
    a('s_mov_b64 vcc, -1')
    a.label(Lretry)
    a.assume(vm=0, lgkm=0)
    a(f's_sub_i32 s{sBUD}, s{sBUD}, 1')
    a(f's_cmp_lt_i32 s{sBUD}, 0')
    a(f's_cbranch_scc1 {Lok}')
    a('s_mov_b64 exec, vcc')
    a('s_waitcnt lgkmcnt(0)')
    emit(a, issue())
    check(0)
    a(f's_cbranch_vccnz {Lretry}')
    a(f's_branch {Lok}')
    a.label(Ltop)
    a.assume(vm=0, lgkm=0)
    cs = CS_(a, 72, 96)
    emit(a, cs('top'))
    check(2)
    a(f's_cbranch_vccnz {Lretry}')
    a.label(Lok)
    a('s_mov_b64 exec, -1')
    lstamp(a, sS, 0, 220)
    emit(a, cs('ok'))
    a(f's_add_u32 s{sH}, s{sH}, {HSEG}')
    a(f's_add_u32 s{sHS}, s{sHS}, {HSEG}')
    a('s_waitcnt lgkmcnt(0)')
    a('s_barrier')
    emit(a, cs('b1'))

    def rd(t):
        return f'ds_read_b128 {vr(RING + 4 * (t % NR), 4)}, v{vB if t < 18 else vB2} offset:{(t % 18) * 1024}'

    def epi1():
        out = []
        acc, cs = ACC[1], CS[1]
        for r in range(0, 4, 2):
            for x in (r, r + 1):
                out.append(f'v_fma_f32 v{acc + x}, -v{MEAN}, v{cs + x}, v{acc + x}')
                out.append(f'v_fma_f32 v{acc + 8 + x}, -v{MEAN}, v{cs + 8 + x}, v{acc + 8 + x}')
            for x in (r, r + 1):
                out.append(f'v_mul_f32 v{acc + x}, v{RS2}, v{acc + x}')
            for x in (r, r + 1):
                out.append(f'v_mul_f32 v{acc + x}, v{acc + x}, v{acc + 8 + x}')
            out.append(f'v_cvt_pk_bf16_f32 v{PK[1] + r // 2}, v{acc + r}, v{acc + r + 1}')
        out.append((f'buffer_store_dwordx2 {vr(PK[1], 2)}, v{vOUT}, {srd(S_WS)}, s{sO2} offen sc1', 'nc'))
        out.append(f's_add_u32 s{sO2}, s{sO2}, {SEGA}')
        return out

    def epi0():
        acc = ACC[0]
        out = []
        for r in range(0, 8, 2):
            out.append(f'v_pk_fma_f32 {vr(acc + r, 2)}, {vr(acc + r, 2)}, {vr(MEAN, 2)}, {vr(TU + r, 2)} op_sel:[0,1,0] op_sel_hi:[1,1,1]')
            out.append(f'v_pk_add_f32 {vr(acc + 8 + r, 2)}, {vr(acc + 8 + r, 2)}, {vr(TU + 8 + r, 2)}')
        for r in range(0, 8, 2):
            out.append(f'v_pk_mul_f32 {vr(acc + r, 2)}, {vr(acc + r, 2)}, {vr(acc + 8 + r, 2)}')
        for r in range(0, 8, 2):
            out.append(f'v_cvt_pk_bf16_f32 v{PK[0] + r // 2}, v{acc + r}, v{acc + r + 1}')
        out.append((f'buffer_store_dwordx4 {vr(PK[0], 4)}, v{vOUT}, {srd(S_WS)}, s{sO} offen sc1', 'nc'))
        out.append(f's_add_u32 s{sO}, s{sO}, {SEGA}')
        return out

    def sen(so, n):
        return [f's_add_u32 s{sT}, s{so}, {2 * SEGA}',
                (f'buffer_store_dwordx{n} {vr(SEN, n)}, v{vOUT}, {srd(S_WS)}, s{sT} offen sc1', 'nc')]

    def tog(r):
        return f'v_add_u32 v{r}, s{sD}, v{r}'

    for t in range(NR - 1):
        a(rd(t))
    mm = []
    for t in range(36):
        x = vr(RING + 4 * (t % NR), 4)
        nx = [rd(t + NR - 1)] if t + NR - 1 < 36 else []
        if t < 18:
            mm.append([f'v_mfma_f32_32x32x16_bf16 {vr(ACC[1], 16)}, {vr(W1 + 4 * t, 4)}, {x}, {"0" if t == 0 else vr(ACC[1], 16)}'])
        mm.append([f'v_mfma_f32_32x32x16_bf16 {vr(ACC[0], 16)}, {vr(W0 + 4 * t, 4)}, {x}, {"0" if t == 0 else vr(ACC[0], 16)}'] + nx)
    fills = {g: [] for g in range(54)}

    def spread(lst, g0, per):
        for j in range(0, len(lst), per):
            fills[g0 + j // per] += lst[j:j + per]
        return g0 + (len(lst) + per - 1) // per
    fills[0] += [f'ds_read_b128 {vr(PT + 4 * j, 4)}, v{vST} offset:{36864 + 1024 * j}' for j in range(3)]
    fills[1] += [tog(vW), tog(vWS)]
    fills[2] += sen(sO, 4) + [tog(vST)]
    fills[4] += sen(sO2, 2)
    s2 = [f'v_add_f32 v{PT + j}, v{PT + j}, v{PT + 4 + j}' for j in range(4)] + \
         [f'v_add_f32 v{PT + j}, v{PT + j}, v{PT + 8 + j}' for j in range(4)] + \
         [f'v_add_f32 v{PT}, v{PT}, v{PT + 1}', f'v_add_f32 v{PT + 2}, v{PT + 2}, v{PT + 3}', f'v_add_f32 v{PT}, v{PT}, v{PT + 2}',
          f'v_mov_b32 v{PT + 1}, v{PT}', f'v_permlane32_swap_b32 v{PT}, v{PT + 1}',
          f'v_mul_f32 v{MEAN}, 0x3ae38e39, v{PT}',
          f'v_mul_f32 v{PT + 1}, 0x3ae38e39, v{PT + 1}',
          f'v_fma_f32 v{PT + 1}, -v{MEAN}, v{MEAN}, v{PT + 1}',
          f'v_max_f32 v{PT + 1}, 0, v{PT + 1}',
          f'v_add_f32 v{PT + 1}, 0x3727c5ac, v{PT + 1}',
          f'v_rcp_f32 v{RS2}, v{PT + 1}',
          f'v_mul_f32 v{PT}, v{MEAN}, v{RS2}']
    s2 += [f'v_mul_f32 v{TU + j}, -v{PT}, v{CS[0] + j}' for j in range(8)]
    s2 += [f'v_mul_f32 v{TU + 8 + j}, -v{MEAN}, v{CS[0] + 8 + j}' for j in range(8)]
    g = spread(s2, 6, 2)
    assert g <= 30
    fills[30] += [tog(vB)]
    fills[36] += xw(ACC[1])
    fills[37] += [('waitfor', 'sw'), 's_barrier']
    rdx, addx = xr(ACC[1])
    fills[38] += rdx
    gl = int(OPT.get('gl', 39))
    iss = issue()
    fills[gl - 1] += iss[:2]
    spread(iss[2:], gl, 1)
    spread(addx + epi1(), 40, 2)
    assert not fills.get(54)
    k = max(g for g in fills if any(isinstance(x, tuple) and 'load' in x[0] for x in fills[g]))
    k2 = max(g for g in fills if any(isinstance(x, tuple) and 'store' in x[0] for x in fills[g]))
    assert k < k2
    fills[50] += [tog(vB2), f's_sub_u32 s{sD}, 0, s{sD}']
    for g in range(54):
        emit(a, mm[g])
        emit(a, fills[g])
        if g in (0, 12, 26, 36, 37, 44, 53):
            emit(a, cs(f'g{g}'))
    emit(a, epi0())
    emit(a, cs('end'))
    lstamp(a, sS, 1, 220)
    a(f's_add_u32 s{sS}, s{sS}, 1')
    a(f's_cmp_lt_u32 s{sS}, 64')
    a(f's_cbranch_scc1 {Ltop}')
    a('s_waitcnt vmcnt(0)')
    stamp(a, 2, real=True, vt=PT)
    stamp(a, 4, vt=PT)
    cs.dump(PT, 'G')
```

```python
from common import *

XB = (0, 36864, 73728, 110592)
STATL = 147456


def gen_qkv(a, s_idx):
    Lv, Lend = a.newlabel('QKV_V'), a.newlabel('QKV_END')
    a(f's_cmp_ge_u32 s{s_idx}, 32')
    a(f's_cbranch_scc1 {Lv}')
    body(a, s_idx, 0)
    a(f's_branch {Lend}')
    a.label(Lv)
    a.assume(vm=0, lgkm=0)
    body(a, s_idx, 1)
    a.label(Lend)


def body(a, s_idx, isv):
    sH, sK, sSO, sM0, sXO, sOUT, sOUT2, sFLG, sCNT, sTMP, sTMP2 = range(56, 67)
    vWD, vA0, vA1 = 1, 2, 3
    vXD, vOUT, vSR, vT0, vT1, vT2, vT3, vFL = 4, 5, 6, 7, 8, 9, 10, 11
    vXF = [[12 + 4 * p + u for u in range(4)] for p in range(4)]
    ONES = 28
    CS = (32, 48)
    ACC = ((64, 80), (96, 112))
    RING, NR = 128, 6
    MS = 152
    PK = (184, 192)

    def W(m, t):
        r = 256 + 144 * m + 4 * t
        return r if r < 512 else r - 512 + 224

    stamp(a, 0, real=True)
    if isv:
        a(f's_sub_u32 s{sH}, s{s_idx}, 32')
        a(f's_lshl_b32 s{sH}, s{sH}, 1')
    else:
        a(f's_mov_b32 s{sH}, s{s_idx}')
    a(f's_lshl_b32 s{sFLG}, s{sH}, 7')
    a(f's_add_u32 s{sFLG}, s{sFLG}, {FLAGS + 4 * isv}')
    a(f'v_and_b32 v{vFL}, {isv}, v0')
    a(f'v_lshlrev_b32 v{vFL}, 7, v{vFL}')
    a(f'v_bfe_u32 v{vT0}, v0, 1, 3')
    a(f'v_bfe_u32 v{vT1}, v0, 4, 1')
    a(f'v_lshlrev_b32 v{vT1}, 2, v{vT1}')
    a(f'v_xor_b32 v{vT0}, v{vT0}, v{vT1}')
    a(f'v_lshlrev_b32 v{vWD}, 13, v{vT0}')
    a(f'v_lshrrev_b32 v{vT0}, 4, v0')
    a(f'v_lshl_add_u32 v{vWD}, v{vT0}, 5, v{vWD}')
    a(f'v_and_b32 v{vT0}, 1, v0')
    a(f'v_lshl_add_u32 v{vWD}, v{vT0}, 4, v{vWD}')
    a(f's_lshl_b32 s{sSO}, s{S_WAVE}, 16')
    a(f's_lshl_b32 s{sTMP}, s{sH}, 8')
    a(f's_add_u32 s{sSO}, s{sSO}, s{sTMP}')
    a(f's_lshl_b32 s{sM0}, s{S_WAVE}, 11')

    def wdma(m, its):
        sw = S_WV if isv else (S_WQ, S_WK)[m]
        for it in its:
            for l in range(2):
                a(f's_add_u32 m0, s{sM0}, {it * 8192 + l * 1024}')
                a(f's_add_u32 s{sTMP}, s{sSO}, {it * 0x40000 + l * 128 + (256 * m if isv else 0)}')
                a(f'buffer_load_dwordx4 v{vWD}, {srd(sw)}, s{sTMP} offen lds', tag=f'w{m}{it // 9}')

    def conv(m, ts):
        for t in ts:
            off = (t % 16) * 4096
            b = (t // 16) * 2
            a(f'ds_read_b64_tr_b16 {vr(W(m, t), 2)}, v{vAB[b]} offset:{off}')
            a(f'ds_read_b64_tr_b16 {vr(W(m, t) + 2, 2)}, v{vAB[b + 1]} offset:{off}')

    wdma(0, range(18))
    vAB = [vA0, vA1, RING, RING + 1, RING + 2, RING + 3]
    a(f'v_lshrrev_b32 v{vT0}, 5, v0')
    a(f'v_lshlrev_b32 v{vA0}, 11, v{vT0}')
    a(f'v_bfe_u32 v{vT1}, v0, 4, 1')
    a(f'v_mul_u32_u24 v{vT2}, 384, v{vT1}')
    a(f'v_add_u32 v{vA0}, v{vA0}, v{vT2}')
    a(f'v_and_b32 v{vT2}, 15, v0')
    a(f'v_lshl_add_u32 v{vA0}, v{vT2}, 3, v{vA0}')
    a(f's_lshl_b32 s{sTMP}, s{S_WAVE}, 9')
    a(f'v_add_u32 v{vA0}, s{sTMP}, v{vA0}')
    a(f'v_xor_b32 v{vA1}, 128, v{vA0}')
    for j in range(2, 6):
        a(f'v_add_u32 v{vAB[j]}, 0x10000, v{vAB[j - 2]}')
    a(f's_and_b32 s{sTMP}, s{S_WAVE}, 1')
    a(f'v_lshrrev_b32 v{vT0}, 3, v0')
    a(f'v_xor_b32 v{vT0}, s{sTMP}, v{vT0}')
    a(f'v_and_b32 v{vT1}, 7, v0')
    a(f'v_xor_b32 v{vT1}, v{vT1}, v{vT0}')
    a(f's_lshl_b32 s{sTMP}, s{S_WAVE}, 3')
    a(f'v_add_u32 v{vT0}, s{sTMP}, v{vT0}')
    a(f'v_mul_u32_u24 v{vXD}, 1152, v{vT0}')
    a(f'v_lshl_add_u32 v{vXD}, v{vT1}, 4, v{vXD}')
    a(f'v_bfe_u32 v{vT0}, v0, 3, 2')
    a(f'v_and_b32 v{vT1}, 7, v0')
    a(f'v_and_b32 v{vT2}, 1, v{vT0}')
    a(f'v_xor_b32 v{vT2}, v{vT2}, v{vT1}')
    a(f'v_lshlrev_b32 v{vT2}, 7, v{vT2}')
    a(f'v_lshl_add_u32 v{vT2}, v{vT0}, 10, v{vT2}')
    a(f'v_lshrrev_b32 v{vT0}, 5, v0')
    a(f'v_xor_b32 v{vT1}, v{vT1}, v{vT0}')
    for u in range(4):
        a(f'v_xor_b32 v{vT3}, {2 * u}, v{vT1}')
        a(f'v_lshl_add_u32 v{vXF[0][u]}, v{vT3}, 4, v{vT2}')
        for p in (1, 2, 3):
            a(f'v_add_u32 v{vXF[p][u]}, {XB[p]}, v{vXF[0][u]}')
    for j in range(4):
        a(f'v_mov_b32 v{ONES + j}, 0x3f803f80')
    if not isv:
        a(f'v_bfe_u32 v{vT0}, v0, 3, 1')
        a(f'v_bfe_u32 v{vT1}, v0, 4, 1')
        a(f'v_and_b32 v{vT2}, 7, v0')
        a(f'v_lshl_add_u32 v{vT1}, v{vT1}, 3, v{vT2}')
    else:
        a(f'v_bfe_u32 v{vT0}, v0, 2, 1')
        a(f'v_bfe_u32 v{vT1}, v0, 3, 2')
        a(f'v_and_b32 v{vT2}, 3, v0')
        a(f'v_lshl_add_u32 v{vT1}, v{vT1}, 2, v{vT2}')
    a(f'v_lshlrev_b32 v{vOUT}, 10, v{vT0}')
    a(f'v_lshl_add_u32 v{vOUT}, v{vT1}, 4, v{vOUT}')
    a(f'v_lshrrev_b32 v{vT0}, 5, v0')
    a(f'v_lshl_add_u32 v{vOUT}, v{vT0}, 8, v{vOUT}')
    a(f's_lshl_b32 s{sTMP}, s{S_WAVE}, 11')
    a(f'v_add_u32 v{vOUT}, s{sTMP}, v{vOUT}')
    if not isv:
        a(f'v_and_b32 v{vSR}, 31, v0')
        a(f'v_lshlrev_b32 v{vSR}, 2, v{vSR}')
    else:
        a(f'v_lshlrev_b32 v{vSR}, 4, v{vT0}')
    a(f'v_add_u32 v{vSR}, {STATL - 256}, v{vSR}')

    def colsum(m):
        for t in range(36):
            A, B = (vr(W(m, t), 4), vr(ONES, 4)) if not isv else (vr(ONES, 4), vr(W(m, t), 4))
            a(f'v_mfma_f32_32x32x16_bf16 {vr(CS[m], 16)}, {A}, {B}, {"0" if t == 0 else vr(CS[m], 16)}')

    for hf in range(2):
        a.waitfor(f'w0{hf}')
        a('s_barrier')
        conv(0, range(18 * hf, 18 * hf + 18))
        a('s_waitcnt lgkmcnt(0)')
        a('s_barrier')
        wdma(1, range(9 * hf, 9 * hf + 9))
    colsum(0)
    a.waitfor('w10')
    a('s_barrier')
    conv(1, range(18))
    a('s_waitcnt lgkmcnt(0)')
    a('s_barrier')

    def xdma(p):
        out = []
        for cb in range(9):
            out.append([f's_add_u32 m0, s{sM0}, {XB[p] + cb * 4096}',
                        f's_add_u32 s{sTMP}, s{sXO}, {cb * 128}',
                        f'buffer_load_dwordx4 v{vXD}, {srd(S_X)}, s{sTMP} offen lds'])
        out.append(f's_add_u32 s{sXO}, s{sXO}, {32 * 1152}')
        return out

    a(f's_lshl_b32 s{sM0}, s{S_WAVE}, 10')
    a(f's_mov_b32 s{sXO}, 0')
    emit(a, xdma(0))
    emit(a, xdma(1))
    a.waitfor('w11')
    a('s_barrier')
    conv(1, range(18, 36))
    wait_init(a, vT0, sTMP)
    a(f'v_lshlrev_b32 v{vT0}, 4, v0')
    a(f's_lshl_b32 s{sTMP}, s{S_WAVE}, 12')
    a(f's_add_u32 m0, s{sTMP}, {STATL}')
    a(f's_add_u32 s{sTMP}, s{sTMP}, {STAT1}')
    for j in range(4):
        a(f'buffer_load_dwordx4 v{vT0}, {srd(S_WS)}, s{sTMP} offen offset:{1024 * j} sc1 lds')
    a('s_waitcnt lgkmcnt(0)')
    a('s_barrier')
    emit(a, xdma(2))
    colsum(1)
    a('s_waitcnt vmcnt(9)')
    a(f's_mov_b32 s{sOUT}, 0x10000000')
    a(f's_mov_b32 s{sOUT2}, 0x10000000')
    a(f's_mov_b32 s{sCNT}, -1')
    a(f's_mov_b32 s{sK}, 16')

    def epilogue(p):
        out = []
        if not isv:
            out.append(f'ds_read2_b32 {vr(MS, 2)}, v{vSR} offset0:0 offset1:32')
        else:
            for q in range(4):
                out.append(f'ds_read_b128 {vr(MS + 4 * q, 4)}, v{vSR} offset:{32 * q}')
                out.append(f'ds_read_b128 {vr(MS + 16 + 4 * q, 4)}, v{vSR} offset:{128 + 32 * q}')
        out.append(f'v_add_u32 v{vSR}, 256, v{vSR}')
        for m in range(2):
            acc = ACC[p][m]
            for r in range(0, 16, 2):
                for x in (r, r + 1):
                    if not isv:
                        out.append(f'v_fma_f32 v{acc + x}, -v{MS}, v{CS[m] + x}, v{acc + x}')
                    else:
                        out.append(f'v_fma_f32 v{acc + x}, -v{MS + x}, v{CS[m]}, v{acc + x}')
                for x in (r, r + 1):
                    out.append(f'v_mul_f32 v{acc + x}, v{MS + 1 if not isv else MS + 16 + x}, v{acc + x}')
                out.append(f'v_cvt_pk_bf16_f32 v{PK[m] + r // 2}, v{acc + r}, v{acc + r + 1}')
                if r in (6, 14):
                    c = r // 8
                    out.append(f'buffer_store_dwordx4 {vr(PK[m] + 4 * c, 4)}, v{vOUT}, {srd(S_WS)}, s{(sOUT, sOUT2)[m]} offen offset:{512 * c} sc1')
        return out

    def flag(lag):
        L = a.newlabel('QF')
        a(f's_cmp_lg_u32 s{S_WAVE}, 0')
        a(f's_cbranch_scc1 {L}')
        a(f's_sub_i32 s{sTMP}, s{sCNT}, {lag}')
        a(f's_max_i32 s{sTMP}, s{sTMP}, 0')
        a(f'v_mov_b32 v{vT0}, s{sTMP}')
        a('s_mov_b64 exec, 3')
        a(f'buffer_store_dword v{vT0}, v{vFL}, {srd(S_WS)}, s{sFLG} offen sc1', tag='nc')
        a('s_mov_b64 exec, -1')
        a.label(L)
        a(f's_add_u32 s{sCNT}, s{sCNT}, 1')

    def next_out():
        return [f's_lshl_b32 s{sOUT}, s{sCNT}, 18',
                f's_lshl_b32 s{sTMP2}, s{sH}, 13',
                f's_add_u32 s{sTMP2}, s{sTMP2}, {VB if isv else QB}',
                f's_add_u32 s{sOUT}, s{sOUT}, s{sTMP2}',
                f's_add_u32 s{sOUT2}, s{sOUT}, {8192 if isv else KB - QB}']

    stamp(a, 1, real=True, vt=PK[0])
    stamp(a, 3, vt=PK[0])
    Lloop = a.newlabel('QKV_LOOP')
    a.label(Lloop)
    for p4 in range(4):
        p = p4 & 1
        a('s_waitcnt vmcnt(13) lgkmcnt(0)')
        a.assume(vm=0)
        a('s_barrier')
        flag(1)

        def rd(t):
            return f'ds_read_b128 {vr(RING + 4 * (t % NR), 4)}, v{vXF[p4][t & 3]} offset:{(t >> 2) * 4096}'
        for t in range(NR - 1):
            a(rd(t))
        dm = xdma((p4 + 3) & 3)
        ep = epilogue(p ^ 1) + [next_out()]
        pe = 0
        for t in range(36):
            x = vr(RING + 4 * (t % NR), 4)
            for m in range(2):
                w = vr(W(m, t), 4)
                A, B = (w, x) if not isv else (x, w)
                a(f'v_mfma_f32_32x32x16_bf16 {vr(ACC[p][m], 16)}, {A}, {B}, {"0" if t == 0 else vr(ACC[p][m], 16)}')
                if m == 1 and t + NR - 1 < 36:
                    a(rd(t + NR - 1))
                if m == 0 and t >= 24 and t - 24 < len(dm):
                    emit(a, dm[t - 24])
                tgt = min(len(ep), (len(ep) * (2 * t + m + 1) + 45) // 46)
                while pe < tgt:
                    emit(a, ep[pe])
                    pe += 1
    a(f's_sub_u32 s{sK}, s{sK}, 1')
    a(f's_cmp_lg_u32 s{sK}, 0')
    a(f's_cbranch_scc1 {Lloop}')
    emit(a, epilogue(1))
    a('s_waitcnt vmcnt(0) lgkmcnt(0)')
    a('s_barrier')
    flag(-1)
    stamp(a, 2, real=True, vt=PK[0])
    stamp(a, 4, vt=PK[0])
```

```python
from common import *

REG = 40960
PL = 36864
RS = 208


def gen_wd(a, s_idx, isD):
    NK = 18 if isD else 16
    NST = 3 if isD else 0
    NRES = NK - NST
    SW = S_WD if isD else S_WO
    SRCB, SEG, TO = (ACT, 4 * 576 * 128, 576 * 128) if isD else (OB, 4 * 512 * 128, 512 * 128)
    sTO, sCS, sS, sA, sR, sO, sT, sT2, sBUD, sW36, sPAR = range(56, 67)
    sG = list(range(68, 73))
    sSO, sONE = 73, 74
    vSO = 47 + 4 * NK + 1
    VS, IDX, vPW, vPX, vPR, vRO, vOO, TG = 0, 1, 2, 3, 4, 5, 6, 7
    RES, RF = 8, 12
    TMP = 16
    ACC = [16, 20, 24]
    A = [48 + 4 * t for t in range(NK)]
    nxt = 48 + 4 * NK
    if not isD:
        nxt += 2
    RING = nxt
    if NST:
        nxt += 24
    nfr = 3 * NRES
    nv = nfr - 32
    first = 256 - 8 * nv
    assert first >= nxt, (first, nxt)
    freg = {(t, cb): first + 8 * (3 * t + cb) for t in range(NRES) for cb in range(3)}

    stamp(a, 0, real=True)
    a(f's_mul_i32 s{sTO}, s{s_idx}, 43')
    a(f's_lshr_b32 s{sTO}, s{sTO}, 9')
    a(f's_mul_i32 s{sT}, s{sTO}, 12')
    a(f's_sub_u32 s{sCS}, s{s_idx}, s{sT}')
    a(f's_mul_i32 s{sW36}, s{S_WAVE}, {REG}')
    a(f's_mov_b32 s{sBUD}, {BUDGET}')
    a(f's_mov_b32 s{sS}, 0')
    a(f's_mul_i32 s{sT}, s{sCS}, {6 * 512}')
    a(f's_lshl_b32 s{sT2}, s{sTO}, 7')
    a(f's_add_u32 s{sT}, s{sT}, s{sT2}')
    a(f's_add_u32 s{sT}, s{sT}, {HB}')
    a(f's_mul_i32 s{sT2}, s{sTO}, {8 * 1152}')
    a(f's_mul_i32 s{sA}, s{sCS}, 96')
    a(f's_add_u32 s{sT2}, s{sT2}, s{sA}')
    a(f's_mov_b32 s{sR if isD else sO}, s{sT}')
    a(f's_mov_b32 s{sO if isD else sR}, s{sT2}')
    a(f's_mul_i32 s{sA}, s{sTO}, {TO}')
    a(f's_mul_i32 s{sT}, s{S_WAVE}, {NK * 1024}')
    a(f's_add_u32 s{sA}, s{sA}, s{sT}')
    a(f's_add_u32 s{sA}, s{sA}, {SRCB}')
    vL, t0, t1, t2 = 16, 17, 18, 19
    vD = [20, 21, 22]
    vT = 23
    a(f'v_mov_b32 v{vL}, v0')
    a(f'v_lshrrev_b32 v{t0}, 3, v{vL}')
    a(f'v_min_u32 v{t0}, 5, v{t0}')
    a(f'v_and_b32 v{t1}, 7, v{vL}')
    vH, vX = (vRO, vOO) if isD else (vOO, vRO)
    a(f'v_lshlrev_b32 v{vH}, 9, v{t0}')
    a(f'v_lshl_add_u32 v{vH}, v{t1}, 4, v{vH}')
    a(f'v_mul_u32_u24 v{vX}, 1152, v{t1}')
    a(f'v_lshl_add_u32 v{vX}, v{t0}, 4, v{vX}')
    a(f'v_mul_u32_u24 v{vPR}, {RS}, v{t1}')
    a(f'v_lshl_add_u32 v{vPR}, v{t0}, 5, v{vPR}')
    a(f'v_add_u32 v{vPR}, {PL}, v{vPR}')
    if not isD:
        a(f'v_lshrrev_b32 v{vSO}, 5, v{vL}')
        a(f'v_lshlrev_b32 v{vSO}, 9, v{vSO}')
        a(f'v_lshl_add_u32 v{vSO}, v{t1}, 4, v{vSO}')
        a(f's_lshr_b32 s{sT}, s{sCS}, 2')
        a(f's_lshl_b32 s{sSO}, s{sT}, 10')
        a(f's_and_b32 s{sT}, s{sCS}, 3')
        a(f's_lshl_b32 s{sT}, s{sT}, 2')
        a(f's_add_u32 s{sSO}, s{sSO}, s{sT}')
        a(f's_lshl_b32 s{sT}, s{sTO}, 7')
        a(f's_add_u32 s{sSO}, s{sSO}, s{sT}')
        a(f's_add_u32 s{sSO}, s{sSO}, {HB + 36864}')
        a(f's_mov_b32 s{sONE}, 0x3f803f80')
    for i in range(3):
        a(f'v_add_u32 v{t0}, {64 * i}, v{vL}')
        a(f'v_mul_u32_u24 v{t1}, 43691, v{t0}')
        a(f'v_lshrrev_b32 v{t1}, 18, v{t1}')
        a(f'v_mul_u32_u24 v{t2}, 6, v{t1}')
        a(f'v_sub_u32 v{t2}, v{t0}, v{t2}')
        a(f'v_mul_u32_u24 v{vD[i]}, 1152, v{t1}')
        a(f'v_lshl_add_u32 v{vD[i]}, v{t2}, 4, v{vD[i]}')

    def dma(n):
        a(f's_mul_i32 s{sT}, s{S_WAVE}, {NK * 64 * 1152}')
        a(f's_mul_i32 s{sT2}, s{sCS}, 96')
        a(f's_add_u32 s{sT}, s{sT}, s{sT2}')
        for i in range(6):
            a(f's_add_u32 m0, s{sW36}, {slot(n) * 6144 + i * 1024}')
            a(f's_add_u32 s{sT2}, s{sT}, {(64 * n + 32 * (i // 3)) * 1152}')
            a(f'buffer_load_dwordx4 v{vD[i % 3]}, {srd(SW)}, s{sT2} offen lds', tag=f'w{n}')

    def slot(n):
        return n % 6

    if 'WD'[isD] in OPT.get('late', 'GD'):
        wait_init(a, t0, sT)
    for n in range(6):
        dma(n)
    a(f'v_lshrrev_b32 v{t0}, 4, v{vL}')
    a(f'v_lshlrev_b32 v{t0}, 3, v{t0}')
    a(f'v_bfe_u32 v{t1}, v{vL}, 3, 1')
    a(f'v_lshl_add_u32 v{t0}, v{t1}, 2, v{t0}')
    a(f'v_bfe_u32 v{t1}, v{vL}, 2, 1')
    a(f'v_add_u32 v{t0}, v{t0}, v{t1}')
    a(f'v_mul_u32_u24 v{vT}, 96, v{t0}')
    a(f'v_and_b32 v{t1}, 3, v{vL}')
    a(f'v_lshl_add_u32 v{vT}, v{t1}, 3, v{vT}')
    a(f'v_add_u32 v{vT}, s{sW36}, v{vT}')
    a(f'v_bfe_u32 v{t0}, v{vL}, 4, 1')
    a(f'v_mul_u32_u24 v{t0}, {4 * RS}, v{t0}')
    a(f'v_and_b32 v{t1}, 15, v{vL}')
    a(f'v_lshl_add_u32 v{t0}, v{t1}, 2, v{t0}')
    a(f'v_add_u32 v{t0}, s{sW36}, v{t0}')
    a(f'v_lshrrev_b32 v{t1}, 5, v{vL}')
    a(f'v_lshl_add_u32 v{vPW}, v{t1}, 6, v{t0}')
    a(f'v_add_u32 v{vPW}, {PL}, v{vPW}')
    a(f'v_mul_u32_u24 v{t1}, {RS}, v{t1}')
    a(f'v_add_u32 v{vPX}, v{t0}, v{t1}')
    a(f'v_add_u32 v{vPX}, {PL + 128}, v{vPX}')
    a(f's_mov_b32 s{sT}, 0xff00ff00')
    a(f's_mov_b32 s{sT + 1}, 0xff00ff00')
    assert sT % 2 == 0
    a(f'v_mov_b32 v{IDX}, 0x4444')
    a(f'v_mov_b32 v{t0}, 0xeeee')
    a(f'v_cndmask_b32 v{IDX}, v{IDX}, v{t0}, s[{sT}:{sT + 1}]')
    a(f'v_lshlrev_b32 v{VS}, 4, v{vL}')
    for n in range(NK):
        a.waitfor(f'w{n}')
        for cb in range(3):
            dst = freg[(n, cb)] if n < NRES else RING + 8 * cb
            for c in range(2):
                for half in range(2):
                    off = slot(n) * 6144 + (32 * c + 2 * half) * 96 + cb * 32
                    a(f'ds_read_b64_tr_b16 {vr(dst + 4 * c + 2 * half, 2)}, v{vT} offset:{off}', tag=f'c{n}')
        if n >= NRES:
            a(f'v_add_u32 v{t0}, s{sW36}, v{VS}')
            for q in range(6):
                a(f'ds_write_b128 v{t0}, {vr(RING + 4 * q, 4)} offset:{slot(n) * 6144 + q * 1024}')
        if n + 6 < NK:
            a.waitfor(f'c{n}')
            dma(n + 6)
    a('s_waitcnt lgkmcnt(0)')
    stamp(a, 1, real=True, vt=t0 + 1)
    wait_init(a, t0, sT)

    def issue():
        for g in range((NK + 3) // 4):
            a(f's_add_u32 s{sG[g]}, s{sA}, {g * 4096}')
        if isD:
            a(f'buffer_load_dwordx4 {vr(RES, 4)}, v{vRO}, {srd(S_WS)}, s{sR} offen sc1')
        else:
            a(f'buffer_load_dwordx4 {vr(RES, 4)}, v{vRO}, {srd(S_X)}, s{sR} offen')
        for t in order:
            a(f'buffer_load_dwordx4 {vr(A[t], 4)}, v{VS}, {srd(S_WS)}, s{sG[t // 4]} offen offset:{(t & 3) * 1024} sc1')

    def ringrd(n):
        return [f'ds_read_b128 {vr(RING + 4 * q, 4)}, v{vLA} offset:{slot(n) * 6144 + q * 1024}' for q in range(6)]

    vLA = 46
    if NST:
        order = [NRES] + list(range(0, 7)) + [NRES + 1] + list(range(7, 15)) + [NRES + 2]
    else:
        order = list(range(NK))
    Lissue, Lround, Lok = a.newlabel('WI'), a.newlabel('WR'), a.newlabel('WK')
    a(f's_mov_b32 s{sPAR}, 0')
    a.label(Lissue)
    a.assume(vm=0, lgkm=0)
    issue()
    a.label(Lround)
    if NST:
        a(f'v_add_u32 v{vLA}, s{sW36}, v{VS}')
        emit(a, ringrd(NRES))
    for r in range(0, 12, 2):
        a(f'v_mov_b64 {vr(ACC[0] + r, 2)}, 0')
    if isD:
        a(f'v_max3_u32 v{TG}, v{RES}, v{RES + 1}, v{RES + 2}')
        a(f'v_max_u32 v{TG}, v{RES + 3}, v{TG}')
    else:
        a(f'v_mov_b32 v{TG}, 0')
    for t in order:
        for cb in range(3):
            B = freg[(t, cb)] if t < NRES else RING + 8 * cb
            a(f'v_smfmac_f32_16x16x64_bf16 {vr(ACC[cb], 4)}, {vr(A[t], 4)}, {vr(B, 8)}, v{IDX}')
            if cb < 2:
                a(f'v_max3_u32 v{TG}, v{A[t] + 2 * cb}, v{A[t] + 2 * cb + 1}, v{TG}')
        if t >= NRES and t + 1 < NK:
            emit(a, ringrd(t + 1))
    a(f'v_cmp_eq_u32 vcc, -1, v{TG}')
    a(f's_sub_i32 s{sBUD}, s{sBUD}, 1')
    a(f's_cmp_lt_i32 s{sBUD}, 0')
    a(f's_cbranch_scc1 {Lok}')
    a(f's_cbranch_vccnz {Lissue}')
    a.label(Lok)
    lstamp(a, sS, 0, 30)
    a(f'v_mov_b64 {vr(RF, 2)}, {vr(RES, 2)}')
    a(f'v_mov_b64 {vr(RF + 2, 2)}, {vr(RES + 2, 2)}')
    a(f's_add_u32 s{sA}, s{sA}, {SEG}')
    a(f's_add_u32 s{sR}, s{sR}, {HSEG if isD else 36864}')
    issue()
    b0, b1, b2 = ACC
    for r in range(4):
        a(f'v_permlane32_swap_b32 v{b0 + r}, v{b1 + r}')
    a(f'v_permlane32_swap_b32 v{b2}, v{b2 + 1}')
    a(f'v_permlane32_swap_b32 v{b2 + 2}, v{b2 + 3}')
    a(f'v_add_u32 v28, s{sPAR}, v{vPW}')
    a(f'v_add_u32 v29, s{sPAR}, v{vPX}')
    for r in range(4):
        a(f'v_add_f32 v{b0 + r}, v{b0 + r}, v{b1 + r}')
    a(f'v_add_f32 v{b2}, v{b2}, v{b2 + 1}')
    a(f'v_add_f32 v{b2 + 2}, v{b2 + 2}, v{b2 + 3}')
    q = RS // 4
    a(f'ds_write2_b32 v28, v{b0}, v{b0 + 1} offset0:0 offset1:{q}', tag='pw')
    a(f'ds_write2_b32 v28, v{b0 + 2}, v{b0 + 3} offset0:{2 * q} offset1:{3 * q}', tag='pw')
    a(f'ds_write2_b32 v29, v{b2}, v{b2 + 2} offset0:0 offset1:{2 * q}', tag='pw')
    a.waitfor('pw')
    a('s_barrier')
    Lnr = a.newlabel('WN')
    a(f's_cmp_lg_u32 s{S_WAVE}, 0')
    a(f's_cbranch_scc1 {Lnr}')
    a(f'v_add_u32 v{TG}, s{sPAR}, v{vPR}')
    a(f'ds_read_b128 {vr(16, 4)}, v{TG}')
    a(f'ds_read_b128 {vr(20, 4)}, v{TG} offset:16')
    a(f'ds_read_b128 {vr(24, 4)}, v{TG} offset:{REG}')
    a(f'ds_read_b128 {vr(28, 4)}, v{TG} offset:{REG + 16}')
    a(f'v_add_u32 v{TG}, {2 * REG}, v{TG}')
    a(f'ds_read_b128 {vr(32, 4)}, v{TG}')
    a(f'ds_read_b128 {vr(36, 4)}, v{TG} offset:16')
    a(f'ds_read_b128 {vr(40, 4)}, v{TG} offset:{REG}')
    a(f'ds_read_b128 {vr(44, 4)}, v{TG} offset:{REG + 16}')
    for j in range(0, 8, 2):
        a(f'v_pk_add_f32 {vr(16 + j, 2)}, {vr(16 + j, 2)}, {vr(24 + j, 2)}')
    for j in range(4):
        a(f'v_lshlrev_b32 v{24 + 2 * j}, 16, v{RF + j}')
        a(f'v_and_b32 v{25 + 2 * j}, 0xffff0000, v{RF + j}')
    for j in range(0, 8, 2):
        a(f'v_pk_add_f32 {vr(16 + j, 2)}, {vr(16 + j, 2)}, {vr(24 + j, 2)}')
    for j in range(0, 8, 2):
        a(f'v_pk_add_f32 {vr(32 + j, 2)}, {vr(32 + j, 2)}, {vr(40 + j, 2)}')
    for j in range(0, 8, 2):
        a(f'v_pk_add_f32 {vr(16 + j, 2)}, {vr(16 + j, 2)}, {vr(32 + j, 2)}')
        a(f'v_cvt_pk_bf16_f32 v{RF + j // 2}, v{16 + j}, v{17 + j}')
    if isD:
        a(f'buffer_store_dwordx4 {vr(RF, 4)}, v{vOO}, {srd(S_OUT)}, s{sO} offen', tag='nc')
    else:
        a.raw(f'  s_waitcnt vmcnt({NK + 1})')
        a(f'buffer_store_dwordx4 {vr(RF, 4)}, v{vOO}, {srd(S_WS)}, s{sO} offen sc1', tag='nc')
        a('v_mov_b64 v[32:33], 0')
        a('s_mov_b32 exec_hi, 0xffff')
        for j in range(4):
            a(f'v_dot2_f32_bf16 v32, v{RF + j}, s{sONE}, v32')
            a(f'v_dot2_f32_bf16 v33, v{RF + j}, v{RF + j}, v33')
        a('s_mov_b32 exec_hi, -1')
        a('v_mov_b64 v[24:25], -1')
        a('v_mov_b64 v[26:27], -1')
        a('v_permlane32_swap_b32 v32, v33')
        a('v_add_f32 v32, v32, v33')
        a(f's_add_u32 s{sT}, s{sO}, {2 * HSEG}')
        a('v_mov_b32 v33, v32')
        a('v_permlane16_swap_b32 v32, v33')
        a('v_add_f32 v32, v32, v33')
        a(f's_add_u32 s{sT2}, s{sSO}, {2 * HSEG}')
        a('v_add_f32_dpp v32, v32, v32 row_ror:8 row_mask:0xf bank_mask:0xf')
        a(f'buffer_store_dword v32, v{vSO}, {srd(S_WS)}, s{sSO} offen sc1', tag='nc')
        a(f'buffer_store_dwordx4 {vr(24, 4)}, v{vOO}, {srd(S_WS)}, s{sT} offen sc1', tag='nc')
        a(f'buffer_store_dword v24, v{vSO}, {srd(S_WS)}, s{sT2} offen sc1', tag='nc')
        a(f's_add_u32 s{sSO}, s{sSO}, {HSEG}')
    a.label(Lnr)
    lstamp(a, sS, 1, 30)
    a(f's_add_u32 s{sO}, s{sO}, {36864 if isD else HSEG}')
    a(f's_xor_b32 s{sPAR}, s{sPAR}, 2048')
    a(f's_add_u32 s{sS}, s{sS}, 1')
    a(f's_cmp_lt_u32 s{sS}, 64')
    a(f's_cbranch_scc1 {Lround}')
    a('s_waitcnt vmcnt(0)')
    stamp(a, 2, real=True, vt=16)
```

```python
import sys
sys.path.insert(0, 'gen')
from common import *

def smf(d, A=4, B=80): return f'v_smfmac_f32_16x16x64_bf16 v[{d}:{d+3}], v[{A}:{A+3}], v[{B}:{B+7}], v1'
P = {}
N = 16
def rep(f): return [x for i in range(N) for x in f(i)]


def miss(kind):
    if kind == 'ld':
        return [f'buffer_load_dword v100, v5, {srd(S_WS)}, s72 offen sc1']
    if kind == 'lds':
        return [f'buffer_load_dword v5, {srd(S_WS)}, s72 offen sc1 lds']
    if kind == 'st':
        return [f'buffer_store_dword v100, v5, {srd(S_WS)}, s72 offen sc1']
    return []
def test(kind, w0wait):
    return rep(lambda i: ['s_barrier'] + miss(kind) + ['s_add_u32 s72, s72, s74', 's_nop 15', f'buffer_load_dwordx4 v[104:107], v0, {srd(S_WS)}, s73 offen sc1',
                          's_memtime s[76:77]', 's_waitcnt vmcnt(0)', 's_memtime s[78:79]', 's_waitcnt lgkmcnt(0)', 's_sub_u32 s78, s78, s76', 's_add_u32 s75, s75, s78'])
for k in ('none', 'ld', 'lds', 'st', 'none2'):
    P[k] = ['s_mov_b32 s75, 0'] + test(k, 1) + ['v_mov_b32 v253, s75', f'buffer_store_dword v253, off, {srd(S_WS)}, s98 offset:{1024 + 4 * len(P)}']

if sys.argv[1] == 'build':
    from build import wrap, assemble
    def f(a):
        a(f'v_lshlrev_b32 v0, 4, v0')
        a(f's_lshl_b32 s61, s{S_WAVE}, 14')
        a(f'v_add_u32 v0, s61, v0')
        a('v_add_u32 v2, 0x100000, v0')
        a('v_mov_b32 v1, 0x4444')
        a('s_mov_b32 s80, 0x00ff00ff')
        a('s_mov_b32 s81, 0x00ff00ff')
        a('s_mov_b32 s70, 0x10000000')
        for r in range(3, 200):
            a(f'v_mov_b32 v{r}, 0')
        a('v_bfe_u32 v3, v0, 2, 8')
        a('v_lshlrev_b32 v5, 5, v3')
        a('s_mov_b32 m0, 0')
        a(f's_cmp_eq_u32 s{S_WAVE}, 0')
        a('s_cselect_b32 s72, 0x1000000, s70')
        a('s_cselect_b32 s73, 0x10000000, 0')
        a('s_cselect_b32 s74, 0x10000, 0')
        for r in range(8):
            a(f'v_accvgpr_write_b32 a{r}, 0')
        a(f's_lshl_b32 s98, s{S_WAVE}, 12')
        a(f's_add_u32 s98, s98, {DIAG}')
        for k, (nm, body) in enumerate(P.items()):
            for rp in range(3):
                a('s_waitcnt vmcnt(0) lgkmcnt(0)')
                a('s_nop 15')
                a('s_barrier')
                a('s_memtime s[90:91]')
                a('s_waitcnt lgkmcnt(0)')
                for x in body * (3 if rp == 2 else 1):
                    a(x)
                a.raw('  s_memtime s[92:93]')
                a('s_waitcnt lgkmcnt(0)')
                a('s_sub_u32 s92, s92, s90')
                a('s_nop 15')
                a('v_mov_b32 v254, s92')
                a(f'buffer_store_dword v254, off, {srd(S_WS)}, s98 offset:{4 * k + (2048 if rp == 2 else 0)}')
        a.label('UBX')
    k = wrap('ub_kernel', 1, f)
    open('ub4.s', 'w').write(file_text([('ub_kernel', 1, 163840)], [k]))
    assemble('ub4.s')
else:
    from harness import *
    c = Ctx()
    c.memset(c.ws, 0)
    c.load('ub4.s')
    c.timed(1)
    d = c.get(c.ws, DIAG, np.uint32, (4, 1024))
    base = None
    for k, nm in enumerate(P):
        print('%-16s' % nm, ' '.join('%6.1f' % ((int(d[w, 512 + k]) - int(d[w, k])) / (2 * N)) for w in range(4)), d[:, k])

    print(d[:, 256:256 + len(P)] / 16)
```

```python
from asmlib import Asm, vr, sr

NAME = 'sequential_preLN__memory_aug_recurrent_mem_tr__glu_gated_bilinear__prompt'

S_X, S_M0, S_WQ, S_WK, S_WV, S_WO, S_WG, S_WU, S_WD, S_OUT, S_DBG, S_WS = range(8, 56, 4)
SIZES = {S_X: 2048 * 1152, S_M0: 8 * 1152, S_WQ: 576 * 8192, S_WK: 576 * 8192, S_WV: 576 * 8192,
         S_WO: 4096 * 1152, S_WG: 576 * 9216, S_WU: 576 * 9216, S_WD: 4608 * 1152, S_OUT: 2048 * 1152,
         S_DBG: 256, S_WS: 0x10000000}
KOFF = {S_X: 0, S_M0: 8, S_WQ: 16, S_WK: 24, S_WV: 32, S_WO: 40, S_WG: 64, S_WU: 72, S_WD: 80, S_OUT: 88,
        S_DBG: 96, S_WS: 104}
S_ROLE, S_WAVE = 4, 5


def srd(b):
    return f's[{b}:{b + 3}]'


QB, KB, VB = 0x0, 0x1000000, 0x2000000
OB = 0x3000000
ACT = 0x4100000
HB = 0x5400000
HSEG = 40960
KMVM = 0x5800000
MEM = 0x6800000
PART = 0x6900000
PBUF = 0x80000
FLAGS = 0x6B00000
DIAG = 0x7000000

D_TICK0 = 0
D_TICK = 128
D_TOTAL = 160
D_CNTA = 164
D_CNTW = 168
D_CNTG = 172
D_CNTC = 176
D_INIT = 64
D_OVF = 68


def prologue(a):
    a('s_load_dwordx16 s[64:79], s[0:1], 0')
    a('s_load_dwordx8 s[80:87], s[0:1], 64')
    a('s_load_dwordx4 s[88:91], s[0:1], 96')
    a('v_lshrrev_b32 v1, 6, v0')
    a('v_and_b32 v0, 63, v0')
    a(f'v_readfirstlane_b32 s{S_WAVE}, v1')
    for b, sz in SIZES.items():
        a(f's_mov_b32 s{b + 2}, {hex(sz)}')
        a(f's_mov_b32 s{b + 3}, 0x20000')
    a('s_waitcnt lgkmcnt(0)')
    for b, off in KOFF.items():
        a(f's_mov_b32 s{b}, s{64 + off // 4}')
        a(f's_and_b32 s{b + 1}, s{65 + off // 4}, 0xffff')


def descriptor(name):
    return f'''.section .rodata,"a"
.p2align 6
.amdhsa_kernel {name}
  .amdhsa_next_free_vgpr 512
  .amdhsa_next_free_sgpr 102
  .amdhsa_accum_offset 256
  .amdhsa_group_segment_fixed_size 0
  .amdhsa_kernarg_size 112
  .amdhsa_user_sgpr_count 2
  .amdhsa_user_sgpr_kernarg_segment_ptr 1
  .amdhsa_system_sgpr_workgroup_id_x 1
.end_amdhsa_kernel
'''


def kernel_text(name, body):
    return f'.text\n.globl {name}\n.p2align 8\n.type {name},@function\n{name}:\n{body}' + descriptor(name)


def file_text(launches, kernels):
    hdr = '; generated by gen/build.py\n'
    if len(launches) == 1 and launches[0][0] == NAME + '_kernel':
        hdr += f'; @launch grid=({launches[0][1]},1,1) block=(256,1,1) lds={launches[0][2]}\n'
    else:
        for k, g, l in launches:
            hdr += f'; @launch kernel={k} grid=({g},1,1) block=(256,1,1) lds={l}\n'
    hdr += '.amdgcn_target "amdgcn-amd-amdhsa--gfx950"\n'
    return hdr + ''.join(kernel_text(n, b) for n, b in kernels)


class Sched:
    @staticmethod
    def weave(a, backbone, fillers, per=None):
        n = len(backbone)
        k = len(fillers)
        pos = 0
        for i, b in enumerate(backbone):
            for x in (b if isinstance(b, list) else [b]):
                emit(a, x)
            tgt = (k * (i + 1) + n - 1) // n if per is None else min(k, per * (i + 1))
            while pos < tgt:
                emit(a, fillers[pos])
                pos += 1
        while pos < k:
            emit(a, fillers[pos])
            pos += 1


def emit(a, x):
    if isinstance(x, tuple):
        if x[0] == 'waitfor':
            a.waitfor(x[1])
        elif x[0] == 'RAW':
            a.raw(x[1])
        else:
            a(x[0], tag=x[1])
    elif isinstance(x, str) and x.startswith('@'):
        pstamp(a, x[1:])
    elif isinstance(x, list):
        for y in x:
            emit(a, y)
    else:
        a(x)


STAT1 = 0x6C00000


def poll_dbg(a, off, target, vt, st, limit=1 << 20):
    L = a.newlabel('POLLD')
    E = a.newlabel('POLLE')
    a(f's_mov_b32 s{st}, {limit}')
    a.label(L)
    a(f'buffer_load_dword v{vt}, off, {srd(S_DBG)}, 0 offset:{off} sc1')
    a('s_waitcnt vmcnt(0)')
    a(f'v_readfirstlane_b32 s{st + 1}, v{vt}')
    a(f's_sub_u32 s{st}, s{st}, 1')
    a(f's_cbranch_scc1 {E}')
    a(f's_cmp_lt_u32 s{st + 1}, {target}')
    a(f's_cbranch_scc1 {L}')
    a.label(E)


DIAG_ON = [False]
OPT = {}


def stamp(a, idx, real=False, vt=254, allwaves=False):
    if not DIAG_ON[0]:
        return
    L = a.newlabel('ST')
    a(f'{"s_memrealtime" if real else "s_memtime"} s[96:97]')
    a(f's_lshl_b32 s98, s{S_ROLE}, 2')
    a(f's_add_u32 s98, s98, s{S_WAVE}')
    a(f's_lshl_b32 s98, s98, 12')
    a(f's_add_u32 s98, s98, {DIAG}')
    a('s_waitcnt lgkmcnt(0)')
    a(f'v_mov_b32 v{vt}, s96')
    a(f'v_mov_b32 v{vt + 1}, s97')
    a(f'buffer_store_dwordx2 v[{vt}:{vt + 1}], off, {srd(S_WS)}, s98 offset:{idx * 8}')


PSREG = list(range(8, 48, 2))
PSN = []


def pstamp(a, name):
    if not DIAG_ON[0] or OPT.get('nois'):
        return
    only = OPT.get('ps')
    if only and name not in only.split(','):
        return
    if only and not PSN:
        PSN.extend(only.split(','))
    if name not in PSN:
        PSN.append(name)
    r = PSREG[PSN.index(name)]
    a.raw(f'  s_memtime s[{r}:{r + 1}]')


ACC = []


def acc_init(a):
    if not DIAG_ON[0] or not OPT.get('acc'):
        return
    if not PSN:
        PSN.extend(OPT['ps'].split(','))
    for k in range(len(PSN)):
        a(f's_mov_b64 s[{PSREG[k]}:{PSREG[k] + 1}], 0')
    for k, pr in enumerate(OPT['acc'].split(',')):
        r = PSREG[-1 - k]
        ACC.append((pr, r))
        a(f's_mov_b32 s{r}, 0')
        a(f's_mov_b32 s{r + 1}, 0')


def acc_step(a):
    if not DIAG_ON[0] or not OPT.get('acc') or OPT.get('nois'):
        return
    a('s_waitcnt lgkmcnt(0)')
    for pr, r in ACC:
        x, y = pr.split(':')
        a(f's_sub_u32 s99, s{PSREG[PSN.index(y)]}, s{PSREG[PSN.index(x)]}')
        a(f's_cmp_lt_u32 s99, 0x100000')
        a(f's_cselect_b32 s99, s99, 0')
        a(f's_max_u32 s{r}, s{r}, s99')
        a(f's_add_u32 s{r + 1}, s{r + 1}, s99')


def pstamp_dump(a, vt=4):
    if not DIAG_ON[0] or OPT.get('nois'):
        return
    a('s_waitcnt lgkmcnt(0)')
    for k, n in enumerate(PSN):
        a(f'v_mov_b32 v{vt}, s{PSREG[k]}')
        a(f'v_mov_b32 v{vt + 1}, s{PSREG[k] + 1}')
        a(f'buffer_store_dwordx2 v[{vt}:{vt + 1}], off, {srd(S_WS)}, s98 offset:{(8 + k) * 8}')
        a('s_nop 1')
    for k, (pr, r) in enumerate(ACC):
        a(f'v_mov_b32 v{vt}, s{r}')
        a(f'v_mov_b32 v{vt + 1}, s{r + 1}')
        a(f'buffer_store_dwordx2 v[{vt}:{vt + 1}], off, {srd(S_WS)}, s98 offset:{(40 + k) * 8}')
        a('s_nop 1')
    a.raw('; PSTAMPS ' + ' '.join(PSN))
    a.raw('; ACCS ' + ' '.join(pr for pr, r in ACC))


def init_done(a, tag, vt):
    a.waitfor(tag)
    a('s_barrier')
    L = a.newlabel('ID')
    a(f's_cmp_lg_u32 s{S_WAVE}, 0')
    a(f's_cbranch_scc1 {L}')
    a('s_mov_b64 exec, 1')
    a(f'v_mov_b32 v{vt}, 1')
    a(f'buffer_atomic_add v{vt}, off, {srd(S_DBG)}, 0 offset:{D_INIT} sc1', tag='nc')
    a('s_mov_b64 exec, -1')
    a.label(L)
    stamp(a, 7, real=True, vt=OPT.get('ivt', 254))


def wait_init(a, vt, st):
    poll_dbg(a, D_INIT, 32, vt, st)


BUDGET = 1 << 17


def lstamp(a, sS, k, vt, n=4):
    if not DIAG_ON[0] or OPT.get('nols'):
        return
    a('s_memrealtime s[96:97]')
    a(f's_lshl_b32 s98, s{S_ROLE}, 2')
    a(f's_add_u32 s98, s98, s{S_WAVE}')
    a(f's_lshl_b32 s98, s98, 12')
    a(f's_mul_i32 s99, s{sS}, {8 * n}')
    a(f's_add_u32 s98, s98, s99')
    a(f's_add_u32 s98, s98, {DIAG + 64 * 8 + 8 * k}')
    a('s_waitcnt lgkmcnt(0)')
    a(f'v_mov_b32 v{vt}, s96')
    a(f'v_mov_b32 v{vt + 1}, s97')
    a(f'buffer_store_dwordx2 v[{vt}:{vt + 1}], off, {srd(S_WS)}, s98', tag='nc')


class CS_:
    def __init__(self, a, first, last):
        self.a, self.regs, self.names = a, list(range(first, last, 2)), []

    def __call__(self, name):
        if not DIAG_ON[0]:
            return []
        r = self.regs[len(self.names)]
        self.names.append(name)
        return [('RAW', f'  s_memtime s[{r}:{r + 1}]')]

    def dump(self, vt, role):
        a = self.a
        if not DIAG_ON[0]:
            return
        a('s_waitcnt lgkmcnt(0)')
        a(f's_lshl_b32 s98, s{S_ROLE}, 2')
        a(f's_add_u32 s98, s98, s{S_WAVE}')
        a(f's_lshl_b32 s98, s98, 12')
        a(f's_add_u32 s98, s98, {DIAG}')
        for k, n in enumerate(self.names):
            a(f'v_mov_b32 v{vt}, s{self.regs[k]}')
            a(f'v_mov_b32 v{vt + 1}, s{self.regs[k] + 1}')
            a(f'buffer_store_dwordx2 v[{vt}:{vt + 1}], off, {srd(S_WS)}, s98 offset:{(8 + k) * 8}')
            a('s_nop 1')
        a.raw(f'; CSTAMPS {role} ' + ' '.join(self.names))
```

```python
from common import *

REG = 40960
CLIST = [0, 1, 8, 2, 3, 4, 5, 6, 7]
SCALE_LOG2E = 0x3e0293ee


OOB = 0x10000000


def gen_chain(a, s_idx, alone=False):
    (sH, sS, sMA, sMB, sD1, sD2, sD3, sMA2, sNW, sKX, sP0, sRL0, sRL1, sMST, sFLG, sKNOWN, sBUD, sT, sT2, sRED,
     sC, sM0, sW36, sFAST) = range(56, 80)
    sHF, sONE, sHALF = 80, 82, 84
    sMB2, sVX, sKM, sP1, sP2, sFW, sPFK, sPFV = 6, 7, 100, 101, 92, 93, 94, 95
    sMS1, sMS2 = sH, sM0
    PST = int(OPT.get('pst', 2))
    VS, IDX, BSEL = 0, 1, 2
    M = [4 + 4 * i for i in range(9)]
    Q0, Q1, K0, K1 = 40, 44, 48, 52
    R = [56, 64]
    XA, XB = 72, 76
    streamed = [('Q', 0), ('Q', 1), ('K', 3), ('Q', 2), ('K', 2), ('V', 5), ('V', 7), ('V', 6), ('V', 8)]
    resident = [(m, s) for m in 'QKV' for s in range(9) if (m, s) not in streamed]
    resident += [('O', (l, t)) for l in range(2) for t in range(4)] + [('O', 8)]
    assert len(resident) == 27
    freg = {}
    nxt = 80
    for ch in resident:
        for cb in range(2):
            freg[ch + (cb,)] = nxt
            nxt += 8
    assert nxt == 512
    slot_of = {ch: i + 1 for i, ch in enumerate(streamed)}

    def ofrag(p, t):
        return freg[('O', 8, t)] if p == 8 else freg[('O', (p >> 1, t), p & 1)]

    def smf(d, A, B):
        return f'v_smfmac_f32_16x16x64_bf16 {vr(d, 4)}, {vr(A, 4)}, {vr(B, 8)}, v{IDX}'

    def ring(m, s, cb, r):
        off = slot_of[(m, s)] * 4096 + cb * 2048
        return [f'ds_read_b128 {vr(r, 4)}, v{VS} offset:{off}', f'ds_read_b128 {vr(r + 4, 4)}, v{VS} offset:{off + 1024}']

    cst = ['']

    def fast_store(txt):
        a(txt + cst[0])

    stamp(a, 0, real=True)
    stamp(a, 1)
    a(f's_mov_b32 s{sH}, s{s_idx}')
    a(f's_mul_i32 s{sW36}, s{S_WAVE}, {REG}')
    a(f's_sub_u32 s{sNW}, 0, s{sW36}')
    for c, sd in ((1, sD1), (2, sD2), (3, sD3)):
        a(f's_xor_b32 s{sT}, s{S_WAVE}, {c}')
        a(f's_mul_i32 s{sT}, s{sT}, {REG}')
        a(f's_sub_u32 s{sd}, s{sT}, s{sW36}')
    a(f's_lshl_b32 s{sKX}, s{sH}, 13')
    a(f's_lshl_b32 s{sT}, s{S_WAVE}, 11')
    a(f's_add_u32 s{sKX}, s{sKX}, s{sT}')
    a(f's_add_u32 s{sKX}, s{sKX}, {KB}')
    a(f's_add_u32 s{sKX}, s{sKX}, s{sNW}')
    a(f's_add_u32 s{sVX}, s{sKX}, {VB - KB}')
    a(f's_add_u32 s{sKM}, s{sKX}, {KMVM - KB}')
    a(f's_mul_i32 s{sP0}, s{S_WAVE}, {3 * 32768}')
    a(f's_lshl_b32 s{sT}, s{sH}, 10')
    a(f's_add_u32 s{sP0}, s{sP0}, s{sT}')
    a(f's_add_u32 s{sP0}, s{sP0}, {PART}')
    a(f's_add_u32 s{sP2}, s{sP0}, {2 * 32768}')
    a(f's_mov_b32 s{sHF}, 0xff00ff00')
    a(f's_mov_b32 s{sHF + 1}, 0xff00ff00')
    a(f's_mov_b32 s{sONE}, 0x3f803f80')
    a(f's_mov_b32 s{sONE + 1}, 0x3f803f80')
    a(f's_mov_b32 s{sHALF}, 0x3f003f00')
    a(f's_mov_b32 s{sHALF + 1}, 0x3f003f00')
    a(f's_lshl_b32 s{sT}, s{S_WAVE}, 5')
    a(f's_add_u32 s{sT}, s{sT}, s{sH}')
    a(f's_cmp_lt_u32 s{sT}, 72')
    a(f's_cselect_b32 s{sRED}, 1, 0')
    a(f's_cselect_b32 s{sT}, s{sT}, 0')
    if OPT.get('el', '1') == '1':
        a(f's_lshr_b32 s{sT2}, s{sH}, 3')
        a(f's_lshl_b32 s{sT2}, s{sT2}, 4')
        a(f's_and_b32 s{sM0}, s{sH}, 7')
        a(f's_add_u32 s{sT2}, s{sT2}, s{sM0}')
        a(f's_lshl_b32 s{sM0}, s{S_WAVE}, 3')
        a(f's_add_u32 s{sT2}, s{sT2}, s{sM0}')
        a(f's_cmp_lt_u32 s{S_WAVE}, 2')
        a(f's_cselect_b32 s{sT}, s{sT2}, s{sT}')
    a(f's_lshr_b32 s{sT2}, s{sT}, 4')
    a(f's_and_b32 s{sM0}, s{sT}, 15')
    a(f's_bfe_u32 s{sRL0}, s{sT}, {1 | 2 << 16}')
    a(f's_and_b32 s{sRL1}, s{sT}, 1')
    a(f's_add_u32 s{sRL1}, s{sRL1}, 16')
    a(f's_cmp_lt_u32 s{sT}, 64')
    a(f's_cselect_b32 s{sT2}, s{sT2}, s{sRL0}')
    a(f's_cselect_b32 s{sM0}, s{sM0}, s{sRL1}')
    a(f's_mul_i32 s{sRL0}, s{sT2}, 3')
    a(f's_lshr_b32 s{sT2}, s{sM0}, 3')
    a(f's_add_u32 s{sRL0}, s{sRL0}, s{sT2}')
    a(f's_lshl_b32 s{sRL0}, s{sRL0}, 15')
    if PST == 2:
        a(f's_and_b32 s{sT2}, s{sM0}, 7')
        a(f's_lshl_b32 s{sT2}, s{sT2}, 7')
        a(f's_add_u32 s{sRL0}, s{sRL0}, s{sT2}')
    else:
        for msk, sh in ((2, 8), (4, 6), (1, 7)):
            a(f's_and_b32 s{sT2}, s{sM0}, {msk}')
            a(f's_lshl_b32 s{sT2}, s{sT2}, {sh}')
            a(f's_add_u32 s{sRL0}, s{sRL0}, s{sT2}')
    a(f's_add_u32 s{sRL0}, s{sRL0}, {PART}')
    SWZ = OPT.get('swz', '1') == '1'
    if SWZ:
        a(f's_lshl_b32 s{sT2}, s{sT}, 7')
        a(f's_and_b32 s{sT2}, s{sT2}, 256')
        a(f's_cmp_lt_u32 s{sT}, 64')
        a(f's_cselect_b32 s{sT2}, 0, s{sT2}')
        a(f's_add_u32 s{sRL0}, s{sRL0}, s{sT2}')
        a(f's_xor_b32 s{sRL1}, s{sRL0}, 512')
        a(f's_add_u32 s{sRL1}, s{sRL1}, 4096')
    else:
        a(f's_add_u32 s{sRL1}, s{sRL0}, 4096')
    a(f's_lshr_b32 s{sT2}, s{sT}, 3')
    a(f's_lshl_b32 s{sMST}, s{sT2}, 10')
    if PST == 2:
        a(f's_and_b32 s{sT2}, s{sT}, 6')
        a(f's_lshl_b32 s{sT2}, s{sT2}, 7')
        a(f's_add_u32 s{sMST}, s{sMST}, s{sT2}')
        a(f's_and_b32 s{sT2}, s{sT}, 1')
        a(f's_lshl_b32 s{sT2}, s{sT2}, 6')
    else:
        a(f's_and_b32 s{sT2}, s{sT}, 7')
        a(f's_lshl_b32 s{sT2}, s{sT2}, 7')
    a(f's_add_u32 s{sMST}, s{sMST}, s{sT2}')
    a(f's_add_u32 s{sMST}, s{sMST}, {MEM}')
    a(f's_lshl_b32 s{sFLG}, s{sH}, 7')
    a(f's_add_u32 s{sFLG}, s{sFLG}, {FLAGS}')
    a(f's_cmp_eq_u32 s{S_WAVE}, 3')
    a(f's_cselect_b32 s{sFW}, s{sFLG}, {OOB}')
    a(f's_mov_b32 s{sBUD}, {1 << 20}')
    a(f's_mov_b32 s{sC}, {hex(SCALE_LOG2E)}')
    a(f's_mov_b32 s{sS}, 0')
    a(f's_mov_b32 s{sKNOWN}, 0')

    vDQ, vDO, vDS, vTO, vTP, vL, t0, t1, t2 = 4, 5, 6, 7, 8, 22, 23, 24, 25
    vTQ, vTV = (18, 19), (20, 21)
    vEI, vET, vEF = 26, 27, 28
    WD = int(OPT.get('wd', 5))
    PARK = [32, 48, 64]
    sBQ, sP19, sBO = sMA, sMB, sMA2
    a(f'v_mov_b32 v{vL}, v0')
    a(f'v_bfe_u32 v{t0}, v{vL}, 4, 1')
    a(f'v_lshlrev_b32 v{t1}, 2, v{t0}')
    a(f'v_and_b32 v{t2}, 7, v{vL}')
    a(f'v_xor_b32 v{t2}, v{t2}, v{t1}')
    a(f'v_lshrrev_b32 v{vDQ}, 5, v{vL}')
    a(f'v_add_u32 v{vDQ}, v{vDQ}, v{t1}')
    a(f'v_bfe_u32 v{t1}, v{vL}, 3, 1')
    a(f'v_lshl_add_u32 v{vDQ}, v{vDQ}, 1, v{t1}')
    a(f'v_lshlrev_b32 v{vDQ}, 13, v{vDQ}')
    a(f'v_lshl_add_u32 v{vDQ}, v{t2}, 4, v{vDQ}')
    a(f's_lshl_b32 s{sBQ}, s{sH}, 8')
    a(f's_lshr_b32 s{sT}, s{S_WAVE}, 1')
    a(f's_lshl_b32 s{sP19}, s{sT}, 21')
    a(f's_lshl_b32 s{sT}, s{sT}, 7')
    a(f's_add_u32 s{sBQ}, s{sBQ}, s{sT}')
    a(f's_and_b32 s{sT}, s{S_WAVE}, 1')
    a(f's_lshl_b32 s{sT}, s{sT}, 18')
    a(f's_add_u32 s{sBQ}, s{sBQ}, s{sT}')
    a(f'v_lshrrev_b32 v{t0}, 3, v{vL}')
    a(f'v_mul_u32_u24 v{vDO}, 1152, v{t0}')
    a(f'v_and_b32 v{t1}, 7, v{vL}')
    a(f'v_lshl_add_u32 v{vDO}, v{t1}, 4, v{vDO}')
    a(f's_mul_i32 s{sBO}, s{sH}, {128 * 1152}')
    a(f'v_lshrrev_b32 v{t0}, 4, v{vL}')
    a(f'v_lshlrev_b32 v{t0}, 1, v{t0}')
    a(f'v_bfe_u32 v{t1}, v{vL}, 2, 1')
    a(f'v_add_u32 v{t0}, v{t0}, v{t1}')
    a(f'v_bfe_u32 v{t1}, v{vL}, 3, 1')
    a(f'v_lshl_add_u32 v{t2}, v{t1}, 5, v{t0}')
    a(f'v_bfe_u32 v{t1}, v{vL}, 1, 1')
    a(f'v_lshl_add_u32 v{t2}, v{t1}, 6, v{t2}')
    a(f's_lshl_b32 s{sT}, s{S_WAVE}, 5')
    a(f'v_xor_b32 v{t2}, s{sT}, v{t2}')
    a(f'v_mul_u32_u24 v{vDS}, 1152, v{t2}')
    a(f'v_and_b32 v{t1}, 1, v{vL}')
    a(f'v_lshl_add_u32 v{vDS}, v{t1}, 4, v{vDS}')

    raw = [('Q', u) for u in (4, 5, 6, 7)] + [('K', u) for u in (1, 3, 4, 5, 6, 7)] + [('V', u) for u in (0, 1, 2, 3, 8)] + \
          [c for c in resident if c[0] == 'O'] + \
          [('Q', 0), ('Q', 1), ('K', 2), ('Q', 2), ('Q', 3), ('K', 0), ('Q', 8), ('K', 8), ('V', 4), ('V', 6), ('V', 5), ('V', 7)]
    assert len(set(raw)) == 36

    def slot(n):
        return (n - 26) % 10

    def dma(n):
        m, u = raw[n]
        if m == 'O':
            sw = S_WO
            if u == 8:
                a(f's_lshl_b32 s{sT}, s{S_WAVE}, 5')
                base, vo = 1024, vDS
            else:
                a(f's_xor_b32 s{sT}, s{S_WAVE}, {u[1]}')
                a(f's_mul_i32 s{sT}, s{sT}, {32 * 1152}')
                a(f's_lshl_b32 s{sT2}, s{S_WAVE}, 8')
                a(f's_add_u32 s{sT}, s{sT}, s{sT2}')
                base, vo = u[0] * 128, vDO
            a(f's_add_u32 s{sT}, s{sT}, s{sBO}')
            offs = [base + i * 8 * 1152 for i in range(4)]
        else:
            if u == 8:
                a(f's_add_u32 s{sT}, s{sBQ}, {8 << 19}')
            else:
                a(f's_xor_b32 s{sT}, s{sP19}, {u << 19}')
                a(f's_add_u32 s{sT}, s{sT}, s{sBQ}')
            vo = vDQ
            offs = [(16 * (i >> 1) + 4 * (i & 1)) * 8192 for i in range(4)]
            sw = {'Q': S_WQ, 'K': S_WK, 'V': S_WV}[m]
        for i in range(4):
            a(f's_add_u32 m0, s{sW36}, {slot(n) * 4096 + i * 1024}')
            a(f's_add_u32 s{sT2}, s{sT}, {offs[i]}')
            a(f'buffer_load_dwordx4 v{vo}, {srd(sw)}, s{sT2} offen lds', tag=f'w{n}')

    sHB, sHX, sHJ, sHC, sHK = 86, 87, 88, 89, 90
    vHA, vHD = 30, 31
    HA = [int(x) for x in OPT.get('ha', '5,8,11,14,24,26,28,30,32,34').split(',') if x]
    HC = [int(x) for x in OPT.get('hc', '6,9,12,25,27,29,33').split(',') if x]
    HKEY = [2, 3, 6, 7, 4, 2, 3, 6, 7, 5, 4, 5]
    LEAD = int(OPT.get('lead', 3))
    a(f's_lshr_b32 s{sHC}, s{S_WQ}, 8')
    a(f's_add_u32 s{sHK}, s{sH}, s{sHC}')
    a(f's_and_b32 s{sHK}, s{sHK}, 31')
    a(f's_xor_b32 s{sT}, s{sHK}, 1')
    a(f's_and_b32 s{sT}, s{sT}, 3')
    a(f's_xor_b32 s{sHB}, s{sT}, s{sHK}')
    a(f's_sub_u32 s{sHB}, s{sHB}, s{sHC}')
    a(f's_and_b32 s{sHB}, s{sHB}, 31')
    a(f's_lshl_b32 s{sHB}, s{sHB}, 8')
    a(f's_lshl_b32 s{sHJ}, s{sT}, 1')
    a(f's_lshr_b32 s{sT2}, s{S_WAVE}, 1')
    a(f's_add_u32 s{sHJ}, s{sHJ}, s{sT2}')
    a(f's_lshl_b32 s{sHK}, s{sHK}, 1')
    a(f's_add_u32 s{sHK}, s{sHK}, s{sT2}')
    a(f's_and_b32 s{sT}, s{S_WAVE}, 1')
    a(f's_lshl_b32 s{sHX}, s{sT}, 21')
    a(f's_lshl_b32 s{sT}, s{sT}, 7')
    a(f's_add_u32 s{sHB}, s{sHB}, s{sT}')
    a(f's_sub_u32 s{sHC}, 31, s{sHC}')
    a(f's_and_b32 s{sHC}, s{sHC}, 31')
    a(f's_lshl_b32 s{sHC}, s{sHC}, 8')
    a(f's_add_u32 s{sHC}, s{sHC}, s{sT}')
    a(f'v_lshlrev_b32 v{vHA}, 13, v{vL}')

    def hand(n):
        for lst, sb, sj, key in ((HA, sHB, sHJ, lambda k: HKEY[k]), (HC, sHC, sHK, lambda k: 8 * k + 6)):
            for k, c in enumerate(lst):
                if max(0, c - WD - LEAD + 1) != n:
                    continue
                m, u = raw[c]
                if u == 8:
                    a(f's_add_u32 s{sT}, s{sb}, {8 << 19}')
                else:
                    a(f's_xor_b32 s{sT}, s{sHX}, {u << 19}')
                    a(f's_add_u32 s{sT}, s{sT}, s{sb}')
                a(f's_cmp_eq_u32 s{sj}, {key(k)}')
                a(f's_cselect_b32 s{sT}, s{sT}, {OOB}')
                a(f'buffer_load_dword v{vHD}, v{vHA}, {srd({"Q": S_WQ, "K": S_WK, "V": S_WV}[m])}, s{sT} offen', tag='hl')

    for n in range(WD):
        dma(n)
        if n == 1:
            hand(0)
    a(f'v_lshrrev_b32 v{t0}, 4, v{vL}')
    a(f'v_and_b32 v{t2}, 3, v{vL}')
    a(f'v_lshlrev_b32 v{vTO}, 9, v{t0}')
    a(f'v_lshl_add_u32 v{vTO}, v{t2}, 3, v{vTO}')
    a(f'v_add_u32 v{vTO}, s{sW36}, v{vTO}')
    a(f'v_bfe_u32 v{t1}, v{vL}, 2, 1')
    a(f'v_lshl_add_u32 v{vTP}, v{t1}, 7, v{vTO}')
    a(f'v_bfe_u32 v{t1}, v{vL}, 3, 1')
    a(f'v_lshl_add_u32 v{vTP}, v{t1}, 5, v{vTP}')
    a(f's_and_b32 s{sT}, s{S_WAVE}, 1')
    a(f'v_xor_b32 v{t1}, s{sT}, v{t1}')
    a(f'v_lshlrev_b32 v{t1}, 6, v{t1}')
    a(f'v_lshl_add_u32 v{t0}, v{t0}, 10, v{t1}')
    a(f'v_bfe_u32 v{t1}, v{vL}, 2, 2')
    a(f'v_lshl_add_u32 v{vTO}, v{t1}, 6, v{vTO}')
    a(f'v_lshl_add_u32 v{t0}, v{t1}, 7, v{t0}')
    a(f's_and_b32 s{sT}, s{S_WAVE}, 2')
    a(f's_mul_i32 s{sT}, s{sT}, {REG}')
    a(f'v_add_u32 v{t0}, s{sT}, v{t0}')
    a(f'v_lshl_add_u32 v{vTV[0]}, v{t2}, 4, v{t0}')
    a(f'v_bfe_u32 v{t1}, v{vL}, 1, 1')
    a(f'v_lshl_add_u32 v{vTQ[0]}, v{t1}, 5, v{t0}')
    a(f'v_and_b32 v{t1}, 1, v{vL}')
    a(f'v_lshl_add_u32 v{vTQ[0]}, v{t1}, 3, v{vTQ[0]}')
    a(f'v_add_u32 v{vTQ[1]}, {REG}, v{vTQ[0]}')
    a(f'v_add_u32 v{vTV[1]}, {REG}, v{vTV[0]}')
    a(f'v_lshlrev_b32 v{VS}, 4, v{vL}')
    a(f'v_add_u32 v{VS}, s{sW36}, v{VS}')

    NINIT = 32 if alone or OPT.get('ainit') else 256
    sINI = sMB2

    def early():
        a(f'v_and_b32 v{t0}, 7, v{vL}')
        a(f'v_mul_u32_u24 v{t0}, 1152, v{t0}')
        a(f'v_lshrrev_b32 v{t1}, 3, v{vL}')
        a(f'v_lshl_add_u32 v{t0}, v{t1}, 4, v{t0}')
        a(f's_lshl_b32 s{sT}, s{S_WAVE}, 8')
        a(f'buffer_load_dwordx4 {vr(M[0], 4)}, v{t0}, {srd(S_M0)}, s{sT} offen')
        a(f'buffer_load_dwordx4 {vr(M[1], 4)}, v{t0}, {srd(S_M0)}, s{sT} offen offset:128')
        a(f'buffer_load_dwordx4 {vr(M[2], 4)}, v{t0}, {srd(S_M0)}, 0 offen offset:1024')
        a.waitfor('ei')
        a(f'v_readfirstlane_b32 s{sINI}, v{vEI}')
        a(f'v_readfirstlane_b32 s{sFAST}, v{vET}')
        a(f's_cmp_ge_u32 s{sINI}, {NINIT}')
        a(f's_cselect_b32 s{sT}, s{sFLG}, {OOB}')
        a(f'buffer_load_dwordx2 {vr(vEF, 2)}, off, {srd(S_WS)}, s{sT} sc1')

    def weights(e):
        free, parked = list(PARK), []

        def flush(n):
            for ch, r in list(parked):
                if slot_of[ch] <= n - 27:
                    for q in range(4):
                        a(f'ds_write_b128 v{VS}, {vr(r + 4 * q, 4)} offset:{slot_of[ch] * 4096 + q * 1024}')
                    parked.remove((ch, r))
                    free.append(r)
        for n in range(36):
            a.waitfor(f'w{n}')
            if n:
                a.waitfor(f'c{n - 1}')
            a('s_barrier')
            if OPT.get('wst'):
                stamp(a, 64 + n, vt=24)
            if n:
                hand(n)
            if n and n + WD - 1 < 36:
                dma(n + WD - 1)
            if n == 37 - 2 * WD:
                a(f'buffer_load_dword v{vEI}, off, {srd(S_DBG)}, 0 offset:{D_INIT} sc1', tag='ei')
                a(f'buffer_load_dword v{vET}, off, {srd(S_DBG)}, 0 offset:{D_TICK0} sc1', tag='ei')
            if n == 36 - WD:
                early()
            flush(n)
            m, u = raw[n]
            ch = (m, u) if m == 'O' else (m, CLIST.index(u if u == 8 else u ^ 2 * e))
            if ch in slot_of:
                parked.append((ch, free.pop(0)))
            for cb in range(2):
                dst = parked[-1][1] + 8 * cb if ch in slot_of else freg[ch + (cb,)]
                for c in range(2):
                    for half in range(2):
                        if m == 'O':
                            vb = vTO if u == 8 else vTP
                            off = c * 2048 + half * 256 + cb * (32 if u == 8 else 64)
                        else:
                            vb = (vTV if m == 'V' else vTQ)[c]
                            off = half * 512 + cb * (8 if m == 'V' else 16)
                        a(f'ds_read_b64_tr_b16 {vr(dst + 4 * c + 2 * half, 2)}, v{vb} offset:{slot(n) * 4096 + off}', tag=f'c{n}')
        a.waitfor('c35')
        a('s_barrier')
        flush(36)
        assert not parked
    HINT = MEM + 0x10000
    sHN, sHP = 86, 87
    LD, ST, TG = K0, K0 + 1, K0 + 2
    SEL, RACC = Q0, K1
    PA, PB = 9, 10

    def red_addr(t=11):
        out = [f'v_add_u32 v{t}, s{sNW}, v{VS}',
               f'v_lshrrev_b32 v{TG}, 8, v{t}']
        if PST == 2:
            out += [f'v_bfe_u32 v{ST}, v{t}, 4, 4',
                    f'v_lshlrev_b32 v{ST}, 3, v{ST}',
                    f'v_lshl_add_u32 v{LD}, v{TG}, 13, v{ST}']
        else:
            out += [f'v_and_b32 v{ST}, 0x70, v{t}',
                    f'v_lshl_add_u32 v{LD}, v{TG}, 13, v{ST}',
                    f'v_bfe_u32 v{ST}, v{t}, 7, 1',
                    f'v_lshl_add_u32 v{LD}, v{ST}, 3, v{LD}']
        out += [f'v_and_b32 v{ST}, 0x30, v{t}',
                f'v_lshrrev_b32 v{t}, 9, v{t}',
                f'v_lshl_add_u32 v{ST}, v{t}, {7 if PST == 2 else 6}, v{ST}',
                f'v_and_b32 v{TG}, 1, v{TG}',
                f'v_lshl_add_u32 v{ST}, v{TG}, 3, v{ST}']
        return out

    def red_sel():
        return [f'v_or_b32_dpp v{SEL}, v{BSEL}, v{BSEL} row_ror:4 row_mask:0xf bank_mask:0xf',
                f'v_or_b32_dpp v{SEL + 1}, v{BSEL + 1}, v{BSEL + 1} row_ror:4 row_mask:0xf bank_mask:0xf',
                f'v_mov_b64 {vr(SEL + 2, 2)}, {vr(SEL, 2)}']

    def part_addr(t=11):
        if PST == 2:
            return [f'v_lshrrev_b32 v{PA}, 1, v{VS}',
                    f'v_bfe_u32 v{t}, v{VS}, 9, 1',
                    f'v_and_b32 v{PB}, 0xf8, v{PA}',
                    f'v_lshl_add_u32 v{PB}, v{t}, 2, v{PB}']
        return [f'v_bfe_u32 v{t}, v{VS}, 8, 1',
                f'v_and_b32 v{PB}, 0xf0, v{VS}',
                f'v_lshl_add_u32 v{PB}, v{t}, 3, v{PB}',
                f'v_bfe_u32 v{t}, v{VS}, 9, 1',
                f'v_lshl_add_u32 v{PB}, v{t}, 2, v{PB}']

    a(f'v_mov_b32 v{IDX}, 0x4444')
    a(f'v_mov_b32 v{t0}, 0xeeee')
    a(f'v_cndmask_b32 v{IDX}, v{IDX}, v{t0}, s[{sHF}:{sHF + 1}]')
    a(f'v_and_b32 v{t0}, 1, v{vL}')
    a(f'v_lshlrev_b32 v{t0}, 4, v{t0}')
    a(f'v_mov_b32 v{t1}, 0x3f80')
    a(f'v_lshlrev_b32 v{t1}, v{t0}, v{t1}')
    a(f'v_bfe_u32 v{t0}, v{vL}, 1, 2')
    a(f'v_bfe_u32 v{t2}, v{vL}, 4, 1')
    a(f'v_lshlrev_b32 v{t2}, 1, v{t2}')
    a(f'v_sub_u32 v{t0}, v{t0}, v{t2}')
    for d in range(2):
        a(f'v_cmp_eq_u32 vcc, {d}, v{t0}')
        a(f'v_cndmask_b32 v{BSEL + d}, 0, v{t1}, vcc')
    if not OPT.get('ainit'):
        emit(a, red_addr(t0))
        for j in range(4):
            a(f'v_mov_b32 v{Q0 + j}, -1')
        for b in range(2):
            for g in range(3):
                a(f's_add_u32 s{sT}, s{sP0}, s{sNW}')
                a(f's_add_u32 s{sT}, s{sT}, {g * 32768 + b * PBUF}')
                a(f'buffer_store_dwordx4 {vr(Q0, 4)}, v{VS}, {srd(S_WS)}, s{sT} offen sc1', tag='init')
        for img in (1, 2):
            a(f's_add_u32 s{sT}, s{sMST}, {img * 16384}')
            a(f's_cmp_eq_u32 s{sRED}, 0')
            a(f's_cselect_b32 s{sT}, {OOB}, s{sT}')
            a(f'buffer_store_dwordx2 {vr(Q0, 2)}, v{ST}, {srd(S_WS)}, s{sT} offen sc1', tag='init')
        a(f's_lshl_b32 s{sT}, s{S_WAVE}, 5')
        a(f's_add_u32 s{sT}, s{sT}, s{sH}')
        a(f's_add_u32 s{sT}, s{sT}, {HINT}')
        a(f'buffer_store_byte v{Q0}, off, {srd(S_WS)}, s{sT} sc1', tag='init')
        a(f'v_mov_b32 v{t0}, 0')
        a(f'buffer_store_dword v{t0}, off, {srd(S_WS)}, s{sFLG} offset:8 sc1', tag='init')
    if PST == 2:
        a(f's_lshr_b32 s{sT}, s{sW36}, 1')
        a(f's_sub_u32 s{sP0}, s{sP0}, s{sT}')
    else:
        a(f's_add_u32 s{sP0}, s{sP0}, s{sNW}')
    if SWZ:
        a(f's_lshl_b32 s{sT}, s{sH}, 7')
        a(f's_and_b32 s{sT}, s{sT}, 512')
        a(f's_add_u32 s{sP2}, s{sP2}, s{sT}')
        a(f's_xor_b32 s{sT2}, s{sT}, 512')
        a(f's_add_u32 s{sP1}, s{sP0}, s{sT2}')
        a(f's_add_u32 s{sP0}, s{sP0}, s{sT}')
        a(f's_and_b32 s{sT}, s{S_WAVE}, 1')
        a(f's_lshl_b32 s{sT}, s{sT}, 8')
        a(f's_add_u32 s{sP2}, s{sP2}, s{sT}')
    else:
        a(f's_add_u32 s{sP1}, s{sP0}, 32768')
    if not OPT.get('ainit'):
        init_done(a, 'init', t0)
    Lodd, Lwd = a.newlabel('WODD'), a.newlabel('WDONE')
    a(f's_bitcmp1_b32 s{S_WAVE}, 0')
    a(f's_cbranch_scc1 {Lodd}')
    a.fork()
    weights(0)
    a(f's_branch {Lwd}')
    a.label(Lodd)
    a.rejoin()
    weights(1)
    a.label(Lwd)
    a('s_waitcnt lgkmcnt(0)')
    stamp(a, 2, vt=Q0)

    def need_flags(delta, fl):
        Lok, Lp = a.newlabel('FOK'), a.newlabel('FP')
        a(f's_add_u32 s{sT}, s{sS}, {delta}')
        a(f's_min_u32 s{sT}, s{sT}, 64')
        a.label(Lp)
        a(f's_cmp_ge_u32 s{sKNOWN}, s{sT}')
        a(f's_cbranch_scc1 {Lok}')
        a(f'buffer_load_dwordx2 {vr(fl, 2)}, off, {srd(S_WS)}, s{sFLG} sc1', tag='nc')
        a.raw('  s_waitcnt vmcnt(0)')
        a(f'v_min_u32 v{fl}, v{fl}, v{fl + 1}')
        a(f'v_readfirstlane_b32 s{sKNOWN}, v{fl}')
        a(f's_sub_i32 s{sBUD}, s{sBUD}, 1')
        a(f's_cmp_ge_i32 s{sBUD}, 0')
        a(f's_cbranch_scc1 {Lp}')
        a.label(Lok)

    PFO = 3072 + 128 - 1024

    def pf_addr(delta):
        return [f's_mul_i32 s{sT}, s{sNW}, 7',
                f's_add_u32 s{sPFK}, s{sKX}, s{sT}',
                f's_add_u32 s{sPFK}, s{sPFK}, {0x40000 * (delta - 1) - PFO}',
                f's_add_u32 s{sT}, s{sS}, {delta}',
                f's_cmp_ge_u32 s{sKNOWN}, s{sT}' if not OPT.get('nopf') else f's_cmp_ge_u32 s{sKNOWN}, 100',
                f's_cselect_b32 s{sPFK}, s{sPFK}, {OOB}']

    def rs_addr():
        return [f's_xor_b32 s{sT}, s{sP2}, {PBUF}', f's_add_u32 s{sT}, s{sT}, s{sNW}', f's_sub_u32 s{sT2}, s{sT}, 65536'] + \
            ([f's_andn2_b32 s{sT2}, s{sT2}, 768'] if SWZ else [])

    def pf(ad, so):
        return ['s_mov_b32 exec_hi, 0', f'buffer_load_dword v{ad}, {srd(S_WS)}, s{so} offen offset:{PFO} sc1 lds', 's_mov_b32 exec_hi, -1']

    def zero(regs):
        return [f'v_mov_b64 {vr(r, 2)}, 0' for r in regs]

    QF = {(0, 0): R[0], (0, 1): R[1], (1, 0): M[3], (1, 1): M[5], (2, 0): M[7], (2, 1): XA}

    def qfrags():
        return [x for (s, cb), r in QF.items() for x in ring('Q', s, cb, r)]

    emit(a, qfrags()[:4])
    a(f's_lshl_b32 s{sHN}, s{S_WAVE}, 5')
    a(f's_add_u32 s{sHN}, s{sHN}, s{sH}')
    a(f's_add_u32 s{sHN}, s{sHN}, {HINT}')
    a(f's_mov_b32 s{sHP}, {HINT}')
    Lin = a.newlabel('CIN')
    a(f'v_min_u32 v{vEF}, v{vEF}, v{vEF + 1}')
    a(f'v_readfirstlane_b32 s{sKNOWN}, v{vEF}')
    emit(a, qfrags()[4:])
    a(f's_cmp_ge_u32 s{sINI}, {NINIT}')
    a(f's_cbranch_scc1 {Lin}')
    poll_dbg(a, D_INIT, NINIT, Q1, sT)
    a.label(Lin)
    need_flags(1, Q1)
    a(f's_add_u32 m0, s{sW36}, 1024')
    a(f's_mov_b32 s{sPFV}, {VB - KB - 2048}')
    a('s_waitcnt vmcnt(0) lgkmcnt(0)')
    emit(a, pf_addr(1))
    emit(a, [f'v_lshlrev_b32 v{K1 + 2}, 3, v{VS}', f'v_bfe_u32 v{K1 + 3}, v{VS}, 8, 1', f'v_mad_u32_u24 v{K1 + 2}, v{K1 + 3}, s{sPFV}, v{K1 + 2}'])
    emit(a, pf(K1 + 2, sPFK))
    emit(a, pf_addr(2))
    emit(a, rs_addr())
    emit(a, zero(range(Q0, Q0 + 14, 2)))
    KI = 0 if OPT.get('rsp') == '2' else -1
    emit(a, [f'v_mov_b64 {vr(K0, 2)}, {KI}', f'v_mov_b64 {vr(K0 + 2, 2)}, {KI}'])
    a(f's_lshl_b32 s{sMA}, s{S_WAVE}, 11')
    a(f's_add_u32 s{sMA}, s{sMA}, s{sNW}')
    a(f's_add_u32 s{sMA}, s{sMA}, {MEM}')
    a(f's_add_u32 s{sMB}, s{sNW}, {MEM + 8192}')
    a('s_barrier')
    stamp(a, 3, vt=K1 + 2)
    a(f'v_mov_b64 {vr(K1 + 2, 2)}, 0')
    a(f'ds_write_b128 v{VS}, {vr(M[0], 4)}')
    a(f'ds_write_b128 v{VS}, {vr(M[1], 4)} offset:1024')
    Lend = a.newlabel('CEND')

    def cvt(d, x, y):
        return f'v_cvt_pk_bf16_f32 v{d}, v{x}, v{y}'

    def trm(b):
        return f'v_mfma_f32_16x16x16_bf16 {vr(b, 4)}, {vr(b, 2)}, {vr(BSEL, 2)}, 0'

    def m32(d, A, B, C='0'):
        return f'v_mfma_f32_16x16x32_bf16 {vr(d, 4)}, {vr(A, 4)}, {vr(B, 4)}, {C}'

    def m16(d, A, B):
        return f'v_mfma_f32_16x16x16_bf16 {vr(d, 4)}, {vr(A, 2)}, {vr(B, 2)}, {vr(d, 4)}'

    def add(d, x, y):
        return f'v_add_f32 v{d}, v{x}, v{y}'

    def swp(n, x, y):
        return f'v_permlane{n}_swap_b32 v{x}, v{y}'

    def st(txt):
        return txt + cst[0]

    def kmst(txt, w):
        o = OPT.get('km', '')
        if 'n' + w in o:
            return []
        return [txt + ('' if 'p' + w in o else ' sc1')]

    def steps():
        Lstep, Lgo, Lp, Lretry = (a.newlabel(x) for x in ('CSTEP', 'CGO', 'MP', 'MR'))
        QA, KA, VA = (Q0, Q1), (K0, K1), (Q1, XB)

        def S(m, s, cb, r=None):
            acc = {'Q': QA, 'K': KA, 'V': VA}[m][cb]
            return smf(acc, M[s], freg[(m, s, cb)] if r is None else r)
        SPEC = int(OPT.get('spec', 1))
        sq = [S('Q', 0, 0, R[0]), S('Q', 0, 1, R[1]), S('Q', 1, 0, M[3]), S('Q', 1, 1, M[5]), S('Q', 2, 0, M[7]), S('Q', 2, 1, XA)]
        if SPEC:
            emit(a, sq[:5])
        a(f's_branch {Lgo}')

        tg = K1 + 3
        PPM, PPR = 0, 0

        def mloads():
            a(f'buffer_load_dwordx4 {vr(M[0], 4)}, v{VS}, {srd(S_WS)}, s{sMA2} offen sc1', tag='nc')
            a(f'buffer_load_dwordx4 {vr(M[1], 4)}, v{VS}, {srd(S_WS)}, s{sMA2} offen offset:1024 sc1', tag='nc')
            a(f'buffer_load_dwordx4 {vr(M[2], 4)}, v{VS}, {srd(S_WS)}, s{sMB2} offen sc1', tag='nc')
        a.label(Lp)
        a.assume(vm=0, lgkm=0)
        xa = [f'v_add_u32 v{M[4]}, s{sD1}, v{VS}', f'v_add_u32 v{M[6]}, s{sD2}, v{VS}', f'v_add_u32 v{M[8]}, s{sD3}, v{VS}']
        a(f's_waitcnt vmcnt(2) lgkmcnt(0)')
        pstamp(a, 'm0')
        a(f'ds_write_b128 v{VS}, {vr(M[0], 4)}', tag='mw')
        emit(a, [sq[0] if SPEC else [], zero((Q1, Q1 + 2)),
                 f'v_max3_u32 v{tg}, v{M[0]}, v{M[0] + 1}, v{M[0] + 2}',
                 sq[1] if SPEC else [], f'v_max_u32 v{tg}, v{M[0] + 3}, v{tg}'])
        a(f's_waitcnt vmcnt(1)')
        a(f'ds_write_b128 v{VS}, {vr(M[1], 4)} offset:1024', tag='mw')
        emit(a, [sq[2] if SPEC else [], f'v_max3_u32 v{tg}, v{M[1]}, v{M[1] + 1}, v{tg}', f'v_max3_u32 v{tg}, v{M[1] + 2}, v{M[1] + 3}, v{tg}',
                 sq[3] if SPEC else []])
        a(f's_waitcnt vmcnt(0)')
        a(f'v_max3_u32 v{tg}, v{M[2]}, v{M[2] + 1}, v{tg}')
        a(f'v_max3_u32 v{tg}, v{M[2] + 2}, v{M[2] + 3}, v{tg}')
        a(f'v_cmp_eq_u32 vcc, -1, v{tg}')
        if SPEC:
            a(sq[4])
        a(f's_cbranch_vccnz {Lretry}')
        a.label(Lgo)
        pstamp(a, 'go')
        rk = ring('K', 2, 0, R[0]) + ring('K', 2, 1, R[1])
        PV_, PA_ = M[7], M[7] + 1
        rs = [[st(f'buffer_store_dwordx4 {vr(K0, 4)}, v{VS}, {srd(S_WS)}, s{sT2} offen'), f's_add_u32 s{sT2}, s{sT2}, 32768'],
              [st(f'buffer_store_dwordx4 {vr(K0, 4)}, v{VS}, {srd(S_WS)}, s{sT2} offen')],
              ['s_mov_b64 exec, 0xffff', st(f'buffer_store_dwordx4 {vr(K0, 4)}, v{VS}, {srd(S_WS)}, s{sT} offen'), 's_mov_b64 exec, -1']]
        RSP = int(OPT.get('rsp', 1))
        rs2 = [[], [], []]
        zk = zero((K0, K0 + 2))
        if RSP == 1:
            rs, rs2 = rs2, rs
        if RSP == 2:
            rs = rs2
            zk = []
        if SPEC:
            assert RSP == 1
            NRK = int(OPT.get('nrk', 4))
            emit(a, ['s_mov_b64 exec, -1', sq[5], f'v_mov_b32 v{tg}, 0', xa[0], xa[1], xa[2], f'v_lshlrev_b32 v{PA_}, 3, v{VS}'])
        else:
            NRK = 0
            emit(a, [sq[0], 's_mov_b64 exec, -1', f'v_mov_b32 v{tg}, 0', rs[0],
                     sq[1], rk[0],
                     sq[2], rk[1], xa[0], rs[1],
                     sq[3], rk[2], xa[1],
                     sq[4], rk[3], xa[2], rs[2],
                     sq[5], f'v_lshlrev_b32 v{PA_}, 3, v{VS}', zk if RSP != 1 else []])
        rk2 = [rk[2], rk[3], rk[0], rk[1]]
        pstamp(a, 'preb1')
        a.waitfor('mw')
        if SPEC:
            emit(a, rk2)
        a('s_barrier')
        pstamp(a, 'b1')
        rd = []
        for i in (3, 5, 7):
            rd.append(f'ds_read_b128 {vr(M[i], 4)}, v{M[i + 1]}')
            rd.append(f'ds_read_b128 {vr(M[i + 1], 4)}, v{M[i + 1]} offset:1024')
        rk = ring('K', 3, 0, R[0]) + ring('K', 3, 1, R[1])
        pk = pf(PA_, sPFK)
        if RSP != 1:
            emit(a, [rd[0], S('K', 0, 1), rd[1], f'buffer_load_dwordx4 {vr(XA, 4)}, v{VS}, {srd(S_WS)}, s{sKX} offen sc1',
                     S('K', 0, 0), rd[2], f'v_bfe_u32 v{PV_}, v{VS}, 8, 1',
                     S('K', 1, 0), rd[3], f'buffer_load_dwordx4 {vr(XB, 4)}, v{VS}, {srd(S_WS)}, s{sKX} offen offset:1024 sc1',
                     S('K', 1, 1), f'v_mad_u32_u24 v{PA_}, v{PV_}, s{sPFV}, v{PA_}', pk[0],
                     S('K', 2, 0, R[0]), pk[1], pk[2], f'v_mov_b32 v{PV_}, s{sS}',
                     S('K', 2, 1, R[1]),
                     f'buffer_store_dword v{PV_}, off, {srd(S_WS)}, s{sFW} offset:8 sc1',
                     S('Q', 3, 0), rd[4], S('Q', 3, 1), rd[5],
                     S('Q', 4, 0), rk[0], S('Q', 4, 1), rk[1], S('Q', 5, 0), rk[2], S('Q', 5, 1), rk[3]])
            for s in range(6, 9):
                emit(a, [S('Q', s, 0), S('Q', s, 1)])
        else:
            emit(a, [rd[0], S('K', 0, 1), rd[1], f'buffer_load_dwordx4 {vr(XA, 4)}, v{VS}, {srd(S_WS)}, s{sKX} offen sc1',
                     S('K', 1, 1), rd[2], f'v_bfe_u32 v{PV_}, v{VS}, 8, 1',
                     f'buffer_load_dwordx4 {vr(XB, 4)}, v{VS}, {srd(S_WS)}, s{sKX} offen offset:1024 sc1',
                     S('K', 2, 1, R[1]), rd[3], f'v_mad_u32_u24 v{PA_}, v{PV_}, s{sPFV}, v{PA_}', pk[0],
                     S('Q', 3, 0), pk[1], pk[2], f'v_mov_b32 v{PV_}, s{sS}',
                     S('Q', 3, 1),
                     f'buffer_store_dword v{PV_}, off, {srd(S_WS)}, s{sFW} offset:8 sc1',
                     S('Q', 4, 0), rd[4], S('Q', 4, 1), rd[5], rs2[0],
                     S('Q', 5, 0), rk[2], S('Q', 5, 1), rk[3], rs2[1],
                     S('Q', 6, 0), S('Q', 6, 1), rs2[2], S('Q', 7, 0), zk[0], S('Q', 7, 1), zk[1],
                     S('K', 2, 0, R[0]), S('K', 0, 0), rk[0], S('K', 1, 0), rk[1],
                     S('Q', 8, 0), S('Q', 8, 1)])
        pstamp(a, 'Q')
        cx = [f'v_cndmask_b32 v{XA + r}, v{XA + r}, v{XB + r}, s[{sHF}:{sHF + 1}]' for r in range(4)]
        PX, PM, mx, tm = R[0], R[0] + 4, R[0] + 6, R[0] + 7
        FA, FB, FC = R[1], M[0], M[2]
        MB = M[4]
        rdx = [f'ds_read_b128 {vr(R[w >> 1] + 4 * (w & 1), 4)}, v{R[w >> 1]} offset:{(w & 1) * REG + 2048}' for w in (1, 0, 3, 2)]
        ax = [add(PX + r, PX + r, PX + 4 + r) for r in range(4)] + [add(FA + r, FA + r, FA + 4 + r) for r in range(4)] + \
             [add(PX + r, PX + r, FA + r) for r in range(4)]
        AM = tm
        rdm = [f'ds_read2st64_b64 {vr(d, 4)}, v{AM} offset0:{6 + 160 * u} offset1:{86 + 160 * u}' for u, d in enumerate((Q0, MB))]
        fb = {(5, 0): FA, (5, 1): FB, (6, 0): FC, (6, 1): FA, (7, 0): FB, (7, 1): FC, (8, 0): FA, (8, 1): FB}
        rv = {k: ring('V', k[0], k[1], r) for k, r in fb.items()}

        def SV(s, cb):
            return S('V', s, cb, fb.get((s, cb)))
        VX1 = K1
        emit(a, [S('K', 3, 0, R[0]), cvt(Q0, Q0, Q0 + 1), cvt(Q0 + 1, Q0 + 2, Q0 + 3),
                 S('K', 3, 1, R[1]), cvt(Q1, Q1, Q1 + 1), cvt(Q1 + 1, Q1 + 2, Q1 + 3),
                 trm(Q0), f'v_and_b32 v{R[0]}, 0x3ff, v{VS}',
                 trm(Q1), f'v_add_u32 v{R[1]}, {2 * REG}, v{R[0]}',
                 S('K', 4, 0), cvt(Q0, Q0, Q0 + 1), cvt(Q0 + 1, Q0 + 2, Q0 + 3),
                 S('K', 5, 0), cvt(Q0 + 2, Q1, Q1 + 1), cvt(Q0 + 3, Q1 + 2, Q1 + 3),
                 S('K', 6, 0), zero((Q1,)), '@kx0',
                 m32(XA, XA, Q0), zero((Q1 + 2,)),
                 m32(XB, XB, Q0), '@kx1',
                 S('K', 7, 0),
                 S('K', 8, 0), cx[0], cx[1],
                 S('K', 4, 1), cx[2], cx[3],
                 S('K', 5, 1), (f'ds_write_b128 v{VS}, {vr(XA, 4)} offset:2048', 'xw'), cvt(K0, K0, K0 + 1),
                 S('K', 6, 1), cvt(K0 + 1, K0 + 2, K0 + 3), zero((XB,)),
                 S('K', 7, 1), zero((XB + 2,)),
                 trm(K0), f'buffer_load_dwordx4 {vr(XA, 4)}, v{VS}, {srd(S_WS)}, s{sVX} offen sc1',
                 S('K', 8, 1), '@K',
                 SV(0, 0), cvt(K0, K0, K0 + 1), ('waitfor', 'xw'), 's_barrier', '@bx',
                 rdx[0], cvt(K1, K1, K1 + 1), cvt(K1 + 1, K1 + 2, K1 + 3), rdx[1], rdx[2],
                 trm(K1), rdx[3], cvt(K0 + 1, K0 + 2, K0 + 3),
                 SV(0, 1),
                 SV(1, 0), cvt(K0 + 2, K1, K1 + 1), cvt(K0 + 3, K1 + 2, K1 + 3),
                 SV(1, 1),
                 m32(Q0, K0, Q0), f'buffer_load_dwordx4 {vr(VX1, 4)}, v{VS}, {srd(S_WS)}, s{sVX} offen offset:1024 sc1',
                 SV(2, 0), ax[0], ax[1],
                 SV(2, 1), (f'ds_write_b128 v{VS}, {vr(Q0, 4)} offset:3072', 'mmw'), '@mmw', ax[2], ax[3],
                 rv[5, 1], ax[4:8],
                 SV(3, 0), ax[8], ax[9],
                 SV(3, 1), ax[10], ax[11], rv[5, 0],
                 SV(4, 0), f'v_bfe_u32 v{mx}, v{VS}, 7, 1', f'v_and_b32 v{AM}, 0x3ff, v{VS}',
                 SV(4, 1), f'v_mad_i32_i24 v{AM}, v{mx}, s{sM120}, v{AM}', rv[6, 0]])
        pstamp(a, 'preb2')
        a.waitfor('mmw')
        a('s_barrier')
        pstamp(a, 'b2')
        ONES, HALF, LS = MB, Q0, 36
        blk = {0: 16, 1: 20, 2: 24, 3: 28, 8: 32}
        AP = (XA, R[0], R[0] + 4, R[1])
        AS = (R[1] + 4, XB)
        mvc = [f'v_mov_b64 {vr(ONES, 2)}, s[{sONE}:{sONE + 1}]', f'v_mov_b64 {vr(ONES + 2, 2)}, s[{sONE}:{sONE + 1}]',
               f'v_mov_b64 {vr(HALF, 2)}, s[{sHALF}:{sHALF + 1}]']
        emit(a, [rdm[0], rdm[1],
                 SV(5, 1), kmst(f'buffer_store_dwordx4 {vr(K0, 4)}, v{VS}, {srd(S_WS)}, s{sKM} offen', 'k'),
                 SV(5, 0), rv[7, 0][0], f'v_max3_f32 v{mx}, v{PX}, v{PX + 1}, v{PX + 2}',
                 SV(6, 0), rv[6, 1][0], rv[6, 1][1],
                 add(PM, Q0, Q0 + 2), add(PM + 1, Q0 + 1, Q0 + 3), f'v_max_f32 v{mx}, v{mx}, v{PX + 3}',
                 add(PM, PM, MB), add(PM + 1, PM + 1, MB + 1), rv[7, 0][1], add(PM, PM, MB + 2), add(PM + 1, PM + 1, MB + 3), '@sum',
                 f'v_max3_f32 v{mx}, v{PM}, v{PM + 1}, v{mx}',
                 rv[7, 1][0], rv[7, 1][1],
                 f'v_max_f32_dpp v{mx}, v{mx}, v{mx} row_ror:8 row_mask:0xf bank_mask:0xf',
                 f'v_mov_b32 v{tm}, v{mx}',
                 SV(6, 1),
                 swp(16, mx, tm), f'v_max_f32 v{mx}, v{mx}, v{tm}', f'v_mov_b32 v{tm}, v{mx}',
                 rv[8, 0][0], rv[8, 0][1],
                 swp(32, mx, tm), f'v_max_f32 v{mx}, v{mx}, v{tm}',
                 SV(7, 0),
                 f'v_mul_f32 v{mx}, s{sC}, v{mx}', rv[8, 1][0], rv[8, 1][1], '@max'])
        fm = [f'v_fma_f32 v{r}, v{r}, s{sC}, -v{mx}' for r in range(PX, PX + 6)]
        ex = [f'v_exp_f32 v{r}, v{r}' for r in range(PX, PX + 6)]

        def dpp(d, s_, bank=0xf):
            return f'v_mov_b32_dpp v{d}, v{s_} row_ror:8 row_mask:0xf bank_mask:{hex(bank)}'

        def mul(r):
            return f'v_mul_f32 v{r}, v{LS}, v{r}'
        TA = 8
        emit(a, [fm, SV(7, 1), ex[0], ex[1], ex[2],
                 SV(8, 0), ex[3], SV(8, 1), ex[4], ex[5], cvt(PX, PX, PX + 1), cvt(PX + 1, PX + 2, PX + 3), mvc[0], mvc[1], cvt(PM, PM, PM + 1),
                 dpp(PX + 2, PX), dpp(PX + 3, PX + 1), dpp(PM + 1, PM), mvc[2], '@P',
                 m32(LS, ONES, PX), cvt(Q1, Q1, Q1 + 1), cvt(Q1 + 1, Q1 + 2, Q1 + 3),
                 m32(XA, XA, PX), cvt(Q1 + 2, XB, XB + 1), cvt(Q1 + 3, XB + 2, XB + 3),
                 m32(VX1, VX1, PX), f'buffer_load_dwordx4 off, {srd(S_WS)}, s{sFLG} sc1 lds', f'v_and_b32 v{TA}, 0xffffff7f, v{VS}',
                 m16(LS, HALF, PM), f'v_add_u32 v{AP[3]}, s{sD3}, v{TA}', zero((16,)),
                 m16(XA, Q1, PM), f'v_add_u32 v{AP[1]}, s{sD1}, v{TA}', zero((18,)),
                 m16(VX1, Q1 + 2, PM), kmst(f'buffer_store_dwordx4 {vr(Q1, 4)}, v{VS}, {srd(S_WS)}, s{sKM} offen offset:1024', 'v'),
                 f'v_rcp_f32 v{LS}, v{LS}', f'v_add_u32 v{AP[2]}, s{sD2}, v{TA}',
                 f'v_cndmask_b32 v{AS[0]}, v{TA}, v{AP[1]}, s[{sHF}:{sHF + 1}]', '@PV',
                 [mul(XA + r) for r in range(4)], cvt(XA, XA, XA + 1), cvt(XA + 1, XA + 2, XA + 3),
                 [mul(VX1 + r) for r in range(4)], cvt(XA + 2, VX1, VX1 + 1), cvt(XA + 3, VX1 + 2, VX1 + 3),
                 (f'ds_write_b128 v{VS}, {vr(XA, 4)}', 'ow'), '@ow',
                 f's_cmp_eq_u32 s{sS}, {OPT.get("last", 63)}', f's_cbranch_scc1 {Lend}',
                 f'v_cndmask_b32 v{AS[1]}, v{AP[2]}, v{AP[3]}, s[{sHF}:{sHF + 1}]',
                 [dpp(XA + r, XA + r, 0xc) for r in range(4)], zero((20, 22, 24, 26, 28, 30, 32, 34)), part_addr()])
        pstamp(a, 'preb3')
        a.waitfor('ow')
        a('s_barrier')
        pstamp(a, 'b3')
        ro = [f'ds_read_b128 {vr(r, 4)}, v{r}' for r in AP[1:] + AS]
        emit(a, [ro[0], smf(blk[0], XA, ofrag(0, 0)), ro[1], smf(blk[1], XA, ofrag(1, 0)), ro[2],
                 smf(blk[2], XA, ofrag(2, 0)), ro[3], ro[4], smf(blk[3], XA, ofrag(3, 0))])
        pstamp(a, 'rdw')

        def fin(p):
            b = blk[p]
            if SWZ:
                sp = (sP0, sP1)[p & 1]
                return [cvt(b, b, b + 1), cvt(b + 1, b + 2, b + 3),
                        [st(f'buffer_store_dwordx2 {vr(b, 2)}, v{PA}, {srd(S_WS)}, s{sp} offen'),
                         f's_add_u32 s{sp}, s{sp}, 32768' if p < 2 else f's_sub_u32 s{sp}, s{sp}, 32768']]
            if PST == 2:
                return [cvt(b, b, b + 1), cvt(b + 1, b + 2, b + 3),
                        st(f'buffer_store_dwordx2 {vr(b, 2)}, v{PA}, {srd(S_WS)}, s{(sP0, sP1)[p >> 1]} offen offset:{512 * (p & 1)}')]
            if not p & 1:
                return [cvt(b, b, b + 1), cvt(b + 1, b + 2, b + 3)]
            x = b - 4
            return [cvt(x + 2, b, b + 1), cvt(x + 3, b + 2, b + 3), swp(16, x, x + 2), swp(16, x + 1, x + 3),
                    st(f'buffer_store_dwordx4 {vr(x, 4)}, v{VS}, {srd(S_WS)}, s{(sP0, sP1)[p >> 1]} offen')]
        b8 = blk[8]
        f8 = [swp(32, b8, b8 + 2), swp(32, b8 + 1, b8 + 3), add(b8, b8, b8 + 2), add(b8 + 1, b8 + 1, b8 + 3),
              cvt(b8, b8, b8 + 1), st(f'buffer_store_dword v{b8}, v{PB}, {srd(S_WS)}, s{sP2} offen')]
        mf = [smf(blk[0], AP[t], ofrag(0, t)) for t in (1, 2, 3)] + [smf(b8, AS[u], ofrag(8, u)) for u in range(2)]
        mf += [smf(blk[p], AP[t], ofrag(p, t)) for p in (1, 2, 3) for t in (1, 2, 3)]
        ra = red_addr() + red_sel()
        f0, f1, f2 = fin(0), fin(1), fin(2)
        sh = {4: f0[:1], 5: f0[1:], 6: f8[:1], 7: f8[1:2], 8: f8[2:4], 9: f8[4:] + f1[:1], 10: f1[1:], 12: f2[:1], 13: f2[1:]}
        for i, x in enumerate(mf):
            emit(a, [x] + sh.get(i, []))
        pstamp(a, 'Wo')
        emit(a, fin(3))
        pstamp(a, 'st')
        emit(a, ra)
        a(f's_add_u32 s{sT}, s{sS}, 1')
        a(f's_and_b32 s{sT}, s{sT}, 3')
        a(f's_lshl_b32 s{sT}, s{sT}, 14')
        a(f's_add_u32 s{sMA2}, s{sMA}, s{sT}')
        a(f's_add_u32 s{sMB2}, s{sMB}, s{sT}')
        a(f's_add_u32 s{sMS1}, s{sMST}, s{sT}')
        a(f's_xor_b32 s{sT}, s{sT}, 0x8000')
        a(f's_add_u32 s{sMS2}, s{sMST}, s{sT}')
        Lnr, Lj = a.newlabel('NR'), a.newlabel('NJ')

        def take_flags(n):
            return [f'ds_read_b64 {vr(FT, 2)}, v{VS} offset:1024', f'v_min_u32 v{FT}, v{FT}, v{FT + 1}',
                    f'v_readfirstlane_b32 s{sKNOWN}, v{FT}']
        FT = K1 + 2
        a(f's_cmp_eq_u32 s{sRED}, 0')
        a(f's_cbranch_scc1 {Lnr}')
        nq = int(OPT.get('nq', 10))
        nqe = int(OPT.get('nqe', nq))
        qf = qfrags()
        DR = [4, 8, 12, Q1]

        def ploads():
            for e in range(8):
                a(f'buffer_load_dwordx2 {vr(DR[e >> 1] + 2 * (e & 1), 2)}, v{LD}, {srd(S_WS)}, s{sRL0 if e < 4 else sRL1} offen offset:{(e & 3) * 1024} sc1', tag='nc')
        Lla = a.newlabel('RL')
        SIG, SG = int(OPT.get('sig', 8)), K0 + 3
        a(f'v_mov_b64 {vr(RACC, 2)}, -1')
        if SIG >= 0:
            a(f'v_mov_b32 v{SG}, s{sS}')
        emit(a, qf[:nqe])
        fast_store(f'buffer_store_dwordx2 {vr(RACC, 2)}, v{ST}, {srd(S_WS)}, s{sMS2} offen')
        later = []

        def reduce(ppr, q0, q1, gap, sigp):
            Lr2, Lro, Lrr = (a.newlabel(x) for x in ('RQ', 'RO', 'RR'))
            emit(a, qf[q0:q1])
            pstamp(a, 'own')
            a.assume(vm=0)
            for k in range(ppr + 1):
                ploads()
                n = gap if k < ppr else 12
                emit(a, qf[q1:q1 + n])
                q1 += n
            pstamp(a, 'ri')
            a.label(Lr2)
            a(f's_sub_i32 s{sBUD}, s{sBUD}, 1')
            x = 0

            def sig(k):
                if k != sigp:
                    return 0
                a(st(f'buffer_store_byte v{SG}, off, {srd(S_WS)}, s{sHN}'), tag='nc')
                return 1
            for it in range(4):
                d = DR[it]
                x += sig(2 * it)
                a(f's_waitcnt vmcnt({8 * ppr + 7 - 2 * it + x})')
                a(f'v_max_u32 v{TG}, v{d}, v{d + 1}' if it == 0 else f'v_max3_u32 v{TG}, v{d}, v{d + 1}, v{TG}')
                if it == 0:
                    pstamp(a, 'r0')
                x += sig(2 * it + 1)
                a(f's_waitcnt vmcnt({8 * ppr + 6 - 2 * it + x})')
                a(f'v_max3_u32 v{TG}, v{d + 2}, v{d + 3}, v{TG}')
                a(m32(RACC, d, SEL, '0' if it == 0 else vr(RACC, 4)))
            pstamp(a, 'r7')
            a(f'v_cmp_eq_u32 vcc, -1, v{TG}')
            a(f's_cbranch_vccnz {Lrr}')
            a.label(Lro)
            a('s_mov_b64 exec, -1')
            sig(8)
            a(cvt(RACC, RACC, RACC + 1))
            a(cvt(RACC + 1, RACC + 2, RACC + 3))
            fast_store(f'buffer_store_dwordx2 {vr(RACC, 2)}, v{ST}, {srd(S_WS)}, s{sMS1} offen')
            pstamp(a, 'red')

            def retry():
                a.label(Lrr)
                a(f's_cmp_lt_i32 s{sBUD}, 0')
                a(f's_cbranch_scc1 {Lro}')
                a('s_mov_b64 exec, vcc')
                pstamp(a, 'rr')
                ploads()
                a(f's_branch {Lr2}')
            later.append(retry)
        a(f's_cmp_eq_u32 s{S_WAVE}, 1')
        a(f's_cbranch_scc1 {Lla}')
        a.fork()
        reduce(int(OPT.get('ppe', 0)), nqe, nqe, int(OPT.get('gape', 0)), int(OPT.get('sige', SIG)))
        a(f's_branch {Lj}')
        a.label(Lla)
        a.rejoin()
        reduce(int(OPT.get('ppl', 0)), nqe, nq, int(OPT.get('gap', 0)), SIG)
        a.label(Lj)
        a.assume(vm=0)

        def part(c):
            if c == 'z':
                emit(a, zero((Q0, Q0 + 2, K1)))
                emit(a, [f'v_mov_b64 {vr(K0, 2)}, {KI}', f'v_mov_b64 {vr(K0 + 2, 2)}, {KI}'])
            if c == 's':
                for r in (sP0, sP1, sP2, sRL0, sRL1):
                    a(f's_xor_b32 s{r}, s{r}, {PBUF}')
                a(f's_add_u32 s{sVX}, s{sVX}, 0x40000')
                a(f's_add_u32 s{sKM}, s{sKM}, 0x40000')
                a(f's_sub_i32 s{sBUD}, s{sBUD}, 1')
            if c == 'f':
                emit(a, take_flags(6 if 'f' in PRE else 9))
            if c == 'b':
                a('s_barrier')
                pstamp(a, 'j')
        PRE = OPT.get('pre', 'b')
        for c in PRE:
            part(c)
        pstamp(a, 'lastpoll')
        mloads()
        for c in 'fsz':
            if c not in PRE:
                part(c)
        acc_step(a)
        need_flags(2, FT)
        emit(a, zero((FT,)))
        emit(a, pf_addr(3))
        emit(a, rs_addr())
        a(f's_add_u32 s{sKX}, s{sKX}, 0x40000')
        a(f's_add_u32 s{sS}, s{sS}, 1')
        a(f's_branch {Lp}')

        a.label(Lnr)
        a.assume(vm=0, lgkm=0)
        if SIG < 0:
            emit(a, qf)
            a('s_waitcnt vmcnt(6)')
            a(f's_branch {Lj}')
        else:
            NP = int(OPT.get('np', 3))
            Lq, Lh = a.newlabel('HQ'), a.newlabel('HP')
            a(f's_cmp_lg_u32 s{S_WAVE}, 3')
            a(f's_cbranch_scc1 {Lq}')
            a(f'v_add_u32 v{LD}, s{sNW}, v{VS}')
            a(f'v_lshrrev_b32 v{LD}, 4, v{LD}')
            n0 = int(OPT.get('hq', 0))
            emit(a, qf[:n0])
            a('s_waitcnt vmcnt(0)')

            def probe(k):
                a(f'buffer_load_sbyte v{4 + k}, v{LD}, {srd(S_WS)}, s{sHP} offen sc1', tag='nc')
            per = (12 - n0) // NP
            for k in range(NP):
                probe(k)
                emit(a, qf[n0 + per * k:n0 + per * (k + 1)] if k < NP - 1 else qf[n0 + per * k:])
            a.label(Lh)
            for k in range(NP):
                a(f's_waitcnt vmcnt({NP - 1})')
                a(f'v_cmp_gt_i32 vcc, s{sS}, v{4 + k}')
                a(f's_cbranch_vccz {Lj}')
                probe(k)
            a(f's_sub_i32 s{sBUD}, s{sBUD}, 1')
            a(f's_cmp_ge_i32 s{sBUD}, 0')
            a(f's_cbranch_scc1 {Lh}')
            a(f's_branch {Lj}')
            a.label(Lq)
            a.assume(vm=0, lgkm=0)
            emit(a, qf)
            a('s_waitcnt vmcnt(6)')
            a(f's_branch {Lj}')

        a.label(Lretry)
        a(f's_cmp_lt_i32 s{sBUD}, 0')
        a(f's_cbranch_scc1 {Lgo}')
        a(f's_sub_i32 s{sBUD}, s{sBUD}, 1')
        if SPEC:
            a('s_mov_b64 exec, -1')
            emit(a, zero(range(Q0, Q0 + 8, 2)))
        a('s_mov_b64 exec, vcc')
        pstamp(a, 'mr')
        mloads()
        a(f's_branch {Lp}')

        for f in later:
            f()

    acc_init(a)
    sM120 = sW36
    a(f's_mov_b32 s{sM120}, -120')
    if alone:
        cst[0] = OPT.get('cst', '')
        steps()
    else:
        Lslow = a.newlabel('CSLOW')
        a(f's_cmp_lt_u32 s{sFAST}, 32')
        a(f's_cbranch_scc1 {Lslow}')
        steps()
        a.label(Lslow)
        cst[0] = ' sc1'
        nois = OPT.get('nois')
        OPT['nois'] = '1'
        steps()
        OPT['nois'] = nois
    a.label(Lend)
    a('s_waitcnt vmcnt(0)')
    a('s_barrier')
    a(f'v_mov_b32 v{M[7]}, 64')
    a(f'buffer_store_dword v{M[7]}, off, {srd(S_WS)}, s{sFW} offset:8 sc1', tag='nc')
    stamp(a, 4)
    stamp(a, 5, real=True)
    if DIAG_ON[0]:
        a(f'v_mov_b32 v4, s{sBUD}')
        a(f'buffer_store_dword v4, off, {srd(S_WS)}, s98 offset:48')
        a('s_getreg_b32 s99, hwreg(HW_REG_HW_ID)')
        a('v_mov_b32 v5, s99')
        a(f'buffer_store_dword v5, off, {srd(S_WS)}, s98 offset:52')
    pstamp_dump(a)
```

```python
from common import *

REG = 40960
SC = 147456
XC = 81920
SEGA = 4 * 576 * 128
NSL = 12


def gen_g(a, s_idx):
    sS, sH, sO, sO2, sT, sT2, sBUD, sRA, sRB, sW36, sONE, sODD = range(56, 68)
    sG = [68, 69, 70]
    sHS, sD = 68, 71
    VS, vB, vB2, vW, vOUT, vSW, vSR, TG, t0, t1, t2, vXW, vXR, vWS = range(14)
    vST = vSW
    MEAN, RS2 = 14, 15
    SU = [16, 17, 18, 19]
    PT = 20
    H = 32
    CS, ACC = (72, 88), (104, 120)
    XP = 136
    RING, NR = 144, 6
    PK, SEN = (168, 172), 176
    H2 = 180
    TU = 180
    W0, W1 = 256, 400

    stamp(a, 0, real=True)
    a(f's_mov_b32 s{sBUD}, {BUDGET}')
    a(f's_mov_b32 s{sONE}, 0x3f803f80')
    a(f's_and_b32 s{sODD}, s{S_WAVE}, 1')
    a(f's_mul_i32 s{sW36}, s{S_WAVE}, {REG}')
    a(f's_mul_i32 s{sT}, s{s_idx}, {12 * 128}')
    a(f's_add_u32 s{sT}, s{sT}, {ACT}')
    a(f's_lshl_b32 s{sO}, s{S_WAVE}, 8')
    a(f's_add_u32 s{sO}, s{sO}, s{sT}')
    a(f's_lshr_b32 s{sO2}, s{S_WAVE}, 1')
    a(f's_lshl_b32 s{sO2}, s{sO2}, 8')
    a(f's_add_u32 s{sO2}, s{sO2}, s{sT}')
    a(f's_lshl_b32 s{sT}, s{sODD}, 3')
    a(f's_add_u32 s{sO2}, s{sO2}, s{sT}')
    a(f's_add_u32 s{sO2}, s{sO2}, 1024')
    a(f'v_and_b32 v{t0}, 31, v0')
    a(f'v_lshrrev_b32 v{t2}, 5, v0')
    a(f'v_lshrrev_b32 v{vOUT}, 3, v{t0}')
    a(f'v_mul_u32_u24 v{vOUT}, {576 * 128}, v{vOUT}')
    a(f'v_lshl_add_u32 v{vOUT}, v{t2}, 7, v{vOUT}')
    a(f'v_and_b32 v{t2}, 7, v0')
    a(f'v_lshl_add_u32 v{vOUT}, v{t2}, 4, v{vOUT}')
    for j in range(4):
        a(f'v_mov_b32 v{SEN + j}, -1')
    if OPT.get('gh', '1') == '1':
        Lv, Lx = a.newlabel('GV'), a.newlabel('GX')
        a(f'v_lshrrev_b32 v{t0}, 1, v0')
        a(f'v_lshlrev_b32 v{t0}, 13, v{t0}')
        a(f'v_and_b32 v{t1}, 1, v0')
        a(f'v_lshl_add_u32 v{t0}, v{t1}, 7, v{t0}')
        a(f'v_lshlrev_b32 v{t1}, 7, v0')
        a(f's_and_b32 s{sRA}, s{s_idx}, 15')
        a(f's_lshl_b32 s{sRA}, s{sRA}, 13')
        a(f's_cmp_eq_u32 s{S_WAVE}, 3')
        a(f's_cselect_b32 s{sRA}, s{sRA}, 0x10000000')
        a(f's_lshl_b32 s{sT2}, s{S_WAVE}, 18')
        a(f's_cmp_ge_u32 s{s_idx}, 32')
        a(f's_cbranch_scc1 {Lv}')
        for isv in range(2):
            if isv:
                a.label(Lv)
                a(f's_sub_u32 s{sT}, s{s_idx}, 32')
                a(f's_lshl_b32 s{sT}, s{sT}, 9')
            else:
                a(f's_lshl_b32 s{sT}, s{s_idx}, 8')
            a(f's_add_u32 s{sT2}, s{sT2}, s{sT}')
            for m, it in [(0, 9), (0, 13), (0, 17), (1, 0), (1, 4), (2, 0), (1, 8), (1, 12), (1, 16)]:
                if m == 2:
                    a(f'buffer_load_dword v{TU}, v{t1}, {srd(S_X)}, s{sRA} offen', tag='nc')
                    continue
                a(f's_add_u32 s{sT}, s{sT2}, {it * 0x40000 + 256 * m * isv}')
                a(f'buffer_load_dword v{TU}, v{t0}, {srd(S_WV if isv else (S_WQ, S_WK)[m])}, s{sT} offen', tag='nc')
            if not isv:
                a(f's_branch {Lx}')
        a.label(Lx)
    if 'G' in OPT.get('late', 'GD'):
        wait_init(a, t0, sT)
    vWD, vA = 16, 17
    a(f'v_lshrrev_b32 v{t0}, 1, v0')
    a(f'v_mul_u32_u24 v{vWD}, 9216, v{t0}')
    a(f'v_and_b32 v{t0}, 1, v0')
    a(f'v_lshl_add_u32 v{vWD}, v{t0}, 4, v{vWD}')
    a(f's_mul_i32 s{sT}, s{s_idx}, 192')
    a(f's_mul_i32 s{sT2}, s{sODD}, {288 * 9216}')
    a(f's_add_u32 s{sRA}, s{sT}, s{sT2}')
    a(f's_sub_u32 s{sRB}, s{sT}, s{sT2}')

    def dma(n):
        if n < 18:
            a(f's_lshl_b32 s{sT}, s{S_WAVE}, 5')
            a(f's_add_u32 s{sT}, s{sT}, s{sRA if n < 9 else sRB}')
            a(f's_add_u32 s{sT}, s{sT}, {n * 32 * 9216}')
        else:
            a(f's_lshr_b32 s{sT}, s{S_WAVE}, 1')
            a(f's_lshl_b32 s{sT}, s{sT}, 5')
            a(f's_add_u32 s{sT}, s{sT}, s{sRA}')
            a(f's_add_u32 s{sT}, s{sT}, {(n - 18) * 32 * 9216 + 128}')
        for l, sw in enumerate((S_WG, S_WU)):
            a(f's_add_u32 m0, s{sW36}, {(n % NSL) * 2048 + l * 1024}')
            a(f'buffer_load_dwordx4 v{vWD}, {srd(sw)}, s{sT} offen lds', tag=f'w{n}')

    for n in range(NSL):
        dma(n)
    a(f'v_lshrrev_b32 v{t0}, 5, v0')
    a(f'v_lshlrev_b32 v{vA}, 8, v{t0}')
    a(f'v_bfe_u32 v{t1}, v0, 4, 1')
    a(f'v_lshl_add_u32 v{vA}, v{t1}, 10, v{vA}')
    a(f'v_and_b32 v{t2}, 15, v0')
    a(f'v_lshl_add_u32 v{vA}, v{t2}, 3, v{vA}')
    a(f'v_add_u32 v{vA}, s{sW36}, v{vA}')
    for n in range(27):
        if n == 18:
            a(f's_lshl_b32 s{sT}, s{sODD}, 4')
            a(f'v_xor_b32 v{vA}, s{sT}, v{vA}')
        a.waitfor(f'w{n}')
        for q in range(4):
            dst = (W0 + 8 * n if n < 18 else W1 + 8 * (n - 18)) + 2 * q
            a(f'ds_read_b64_tr_b16 {vr(dst, 2)}, v{vA} offset:{(n % NSL) * 2048 + (q >> 1) * 512 + (q & 1) * 128}', tag=f'c{n}')
        if n + NSL < 27:
            a.waitfor(f'c{n}')
            dma(n + NSL)
    for j in range(4):
        a(f'v_mov_b32 v{PK[0] + j}, s{sONE}')
    for t in range(36):
        a(f'v_mfma_f32_32x32x16_bf16 {vr(CS[0], 16)}, {vr(W0 + 4 * t, 4)}, {vr(PK[0], 4)}, {"0" if t == 0 else vr(CS[0], 16)}')
        if t < 18:
            a(f'v_mfma_f32_32x32x16_bf16 {vr(CS[1], 16)}, {vr(W1 + 4 * t, 4)}, {vr(PK[0], 4)}, {"0" if t == 0 else vr(CS[1], 16)}')
    a(f'v_lshlrev_b32 v{VS}, 4, v0')
    a(f's_mul_i32 s{sT}, s{sODD}, {18 * 1024}')
    a(f'v_add_u32 v{vB}, s{sT}, v{VS}')
    a(f's_xor_b32 s{sT}, s{sT}, {18 * 1024}')
    a(f'v_add_u32 v{vB2}, s{sT}, v{VS}')
    a(f's_mul_i32 s{sT}, s{S_WAVE}, 9216')
    a(f'v_add_u32 v{vW}, s{sT}, v{VS}')
    a(f's_add_u32 s{sH}, s{sT}, {HB}')
    a(f's_lshl_b32 s{sT}, s{S_WAVE}, 10')
    a(f's_add_u32 s{sT}, s{sT}, 36864')
    a(f'v_add_u32 v{vWS}, s{sT}, v{VS}')
    a(f's_add_u32 s{sHS}, s{sT}, {HB}')
    a(f's_cmp_eq_u32 s{S_WAVE}, 3')
    a(f's_cselect_b32 s{sHS}, 0x10000000, s{sHS}')
    a(f'v_mov_b32 v{vST}, v{VS}')
    a(f's_mov_b32 s{sD}, {HSEG}')
    a(f's_lshl_b32 s{sT}, s{S_WAVE}, 11')
    a(f's_add_u32 s{sT}, s{sT}, {XC}')
    a(f'v_add_u32 v{vXW}, s{sT}, v{VS}')
    a(f'v_xor_b32 v{vXR}, 2048, v{vXW}')
    a(f's_mov_b32 s{sS}, 0')
    a('s_waitcnt lgkmcnt(0)')
    a('s_barrier')

    def xw(r):
        return [(f'ds_write_b128 v{vXW}, {vr(r + 4 + 8 * q, 4)} offset:{1024 * q}', 'sw') for q in range(2)]

    def xr(r):
        return [f'ds_read_b128 {vr(XP + 4 * q, 4)}, v{vXR} offset:{1024 * q}' for q in range(2)], \
               [f'v_add_f32 v{r + 8 * (j >> 2) + (j & 3)}, v{r + 8 * (j >> 2) + (j & 3)}, v{XP + j}' for j in range(8)]
    emit(a, xw(CS[1]))
    a.waitfor('sw')
    a('s_barrier')
    emit(a, list(xr(CS[1])))
    stamp(a, 1, real=True, vt=PT)
    stamp(a, 3, vt=PT)
    wait_init(a, t0, sT)

    def issue():
        out = [f's_add_u32 s{sG[g]}, s{sH}, {g * 4096}' for g in (1, 2)]
        for j in range(9):
            out.append((f'buffer_load_dwordx4 {vr(H + 4 * j, 4)}, v{VS}, {srd(S_WS)}, s{sG[j // 4] if j >= 4 else sH} offen offset:{(j & 3) * 1024} sc1', 'nc'))
        out.append((f'buffer_load_dwordx4 {vr(H + 36, 4)}, v{VS}, {srd(S_WS)}, s{sHS} offen sc1', 'nc'))
        return out

    def check(ny):
        for j in range(10):
            r = H + 4 * j
            a(f's_waitcnt vmcnt({9 - j + ny})')
            a(f'ds_write_b128 v{vW if j < 9 else vWS}, {vr(r, 4)} offset:{(j % 9) * 1024}', tag='hw')
            if j == 0:
                a(f'v_max3_u32 v{TG}, v{r}, v{r + 1}, v{r + 2}')
                a(f'v_max_u32 v{TG}, v{r + 3}, v{TG}')
            else:
                a(f'v_max3_u32 v{TG}, v{r}, v{r + 1}, v{TG}')
                a(f'v_max3_u32 v{TG}, v{r + 2}, v{r + 3}, v{TG}')
        a(f'v_cmp_eq_u32 vcc, -1, v{TG}')

    Lretry, Ltop, Lok, Lchk = (a.newlabel(x) for x in ('GR', 'GT', 'GK', 'GC'))
    a('s_waitcnt vmcnt(0) lgkmcnt(0)')
    a('s_mov_b64 vcc, -1')
    a.label(Lretry)
    a.assume(vm=0, lgkm=0)
    a(f's_sub_i32 s{sBUD}, s{sBUD}, 1')
    a(f's_cmp_lt_i32 s{sBUD}, 0')
    a(f's_cbranch_scc1 {Lok}')
    a('s_mov_b64 exec, vcc')
    a('s_waitcnt lgkmcnt(0)')
    emit(a, issue())
    check(0)
    a(f's_cbranch_vccnz {Lretry}')
    a(f's_branch {Lok}')
    a.label(Ltop)
    a.assume(vm=0, lgkm=0)
    cs = CS_(a, 72, 96)
    emit(a, cs('top'))
    check(2)
    a(f's_cbranch_vccnz {Lretry}')
    a.label(Lok)
    a('s_mov_b64 exec, -1')
    lstamp(a, sS, 0, 220)
    emit(a, cs('ok'))
    a(f's_add_u32 s{sH}, s{sH}, {HSEG}')
    a(f's_add_u32 s{sHS}, s{sHS}, {HSEG}')
    a('s_waitcnt lgkmcnt(0)')
    a('s_barrier')
    emit(a, cs('b1'))

    def rd(t):
        return f'ds_read_b128 {vr(RING + 4 * (t % NR), 4)}, v{vB if t < 18 else vB2} offset:{(t % 18) * 1024}'

    def epi1():
        out = []
        acc, cs = ACC[1], CS[1]
        for r in range(0, 4, 2):
            for x in (r, r + 1):
                out.append(f'v_fma_f32 v{acc + x}, -v{MEAN}, v{cs + x}, v{acc + x}')
                out.append(f'v_fma_f32 v{acc + 8 + x}, -v{MEAN}, v{cs + 8 + x}, v{acc + 8 + x}')
            for x in (r, r + 1):
                out.append(f'v_mul_f32 v{acc + x}, v{RS2}, v{acc + x}')
            for x in (r, r + 1):
                out.append(f'v_mul_f32 v{acc + x}, v{acc + x}, v{acc + 8 + x}')
            out.append(f'v_cvt_pk_bf16_f32 v{PK[1] + r // 2}, v{acc + r}, v{acc + r + 1}')
        out.append((f'buffer_store_dwordx2 {vr(PK[1], 2)}, v{vOUT}, {srd(S_WS)}, s{sO2} offen sc1', 'nc'))
        out.append(f's_add_u32 s{sO2}, s{sO2}, {SEGA}')
        return out

    def epi0():
        acc = ACC[0]
        out = []
        for r in range(0, 8, 2):
            out.append(f'v_pk_fma_f32 {vr(acc + r, 2)}, {vr(acc + r, 2)}, {vr(MEAN, 2)}, {vr(TU + r, 2)} op_sel:[0,1,0] op_sel_hi:[1,1,1]')
            out.append(f'v_pk_add_f32 {vr(acc + 8 + r, 2)}, {vr(acc + 8 + r, 2)}, {vr(TU + 8 + r, 2)}')
        for r in range(0, 8, 2):
            out.append(f'v_pk_mul_f32 {vr(acc + r, 2)}, {vr(acc + r, 2)}, {vr(acc + 8 + r, 2)}')
        for r in range(0, 8, 2):
            out.append(f'v_cvt_pk_bf16_f32 v{PK[0] + r // 2}, v{acc + r}, v{acc + r + 1}')
        out.append((f'buffer_store_dwordx4 {vr(PK[0], 4)}, v{vOUT}, {srd(S_WS)}, s{sO} offen sc1', 'nc'))
        out.append(f's_add_u32 s{sO}, s{sO}, {SEGA}')
        return out

    def sen(so, n):
        return [f's_add_u32 s{sT}, s{so}, {2 * SEGA}',
                (f'buffer_store_dwordx{n} {vr(SEN, n)}, v{vOUT}, {srd(S_WS)}, s{sT} offen sc1', 'nc')]

    def tog(r):
        return f'v_add_u32 v{r}, s{sD}, v{r}'

    for t in range(NR - 1):
        a(rd(t))
    mm = []
    for t in range(36):
        x = vr(RING + 4 * (t % NR), 4)
        nx = [rd(t + NR - 1)] if t + NR - 1 < 36 else []
        if t < 18:
            mm.append([f'v_mfma_f32_32x32x16_bf16 {vr(ACC[1], 16)}, {vr(W1 + 4 * t, 4)}, {x}, {"0" if t == 0 else vr(ACC[1], 16)}'])
        mm.append([f'v_mfma_f32_32x32x16_bf16 {vr(ACC[0], 16)}, {vr(W0 + 4 * t, 4)}, {x}, {"0" if t == 0 else vr(ACC[0], 16)}'] + nx)
    fills = {g: [] for g in range(54)}

    def spread(lst, g0, per):
        for j in range(0, len(lst), per):
            fills[g0 + j // per] += lst[j:j + per]
        return g0 + (len(lst) + per - 1) // per
    fills[0] += [f'ds_read_b128 {vr(PT + 4 * j, 4)}, v{vST} offset:{36864 + 1024 * j}' for j in range(3)]
    fills[1] += [tog(vW), tog(vWS)]
    fills[2] += sen(sO, 4) + [tog(vST)]
    fills[4] += sen(sO2, 2)
    s2 = [f'v_add_f32 v{PT + j}, v{PT + j}, v{PT + 4 + j}' for j in range(4)] + \
         [f'v_add_f32 v{PT + j}, v{PT + j}, v{PT + 8 + j}' for j in range(4)] + \
         [f'v_add_f32 v{PT}, v{PT}, v{PT + 1}', f'v_add_f32 v{PT + 2}, v{PT + 2}, v{PT + 3}', f'v_add_f32 v{PT}, v{PT}, v{PT + 2}',
          f'v_mov_b32 v{PT + 1}, v{PT}', f'v_permlane32_swap_b32 v{PT}, v{PT + 1}',
          f'v_mul_f32 v{MEAN}, 0x3ae38e39, v{PT}',
          f'v_mul_f32 v{PT + 1}, 0x3ae38e39, v{PT + 1}',
          f'v_fma_f32 v{PT + 1}, -v{MEAN}, v{MEAN}, v{PT + 1}',
          f'v_max_f32 v{PT + 1}, 0, v{PT + 1}',
          f'v_add_f32 v{PT + 1}, 0x3727c5ac, v{PT + 1}',
          f'v_rcp_f32 v{RS2}, v{PT + 1}',
          f'v_mul_f32 v{PT}, v{MEAN}, v{RS2}']
    s2 += [f'v_mul_f32 v{TU + j}, -v{PT}, v{CS[0] + j}' for j in range(8)]
    s2 += [f'v_mul_f32 v{TU + 8 + j}, -v{MEAN}, v{CS[0] + 8 + j}' for j in range(8)]
    g = spread(s2, 6, 2)
    assert g <= 30
    fills[30] += [tog(vB)]
    fills[36] += xw(ACC[1])
    fills[37] += [('waitfor', 'sw'), 's_barrier']
    rdx, addx = xr(ACC[1])
    fills[38] += rdx
    gl = int(OPT.get('gl', 39))
    iss = issue()
    fills[gl - 1] += iss[:2]
    spread(iss[2:], gl, 1)
    spread(addx + epi1(), 40, 2)
    assert not fills.get(54)
    k = max(g for g in fills if any(isinstance(x, tuple) and 'load' in x[0] for x in fills[g]))
    k2 = max(g for g in fills if any(isinstance(x, tuple) and 'store' in x[0] for x in fills[g]))
    assert k < k2
    fills[50] += [tog(vB2), f's_sub_u32 s{sD}, 0, s{sD}']
    for g in range(54):
        emit(a, mm[g])
        emit(a, fills[g])
        if g in (0, 12, 26, 36, 37, 44, 53):
            emit(a, cs(f'g{g}'))
    emit(a, epi0())
    emit(a, cs('end'))
    lstamp(a, sS, 1, 220)
    a(f's_add_u32 s{sS}, s{sS}, 1')
    a(f's_cmp_lt_u32 s{sS}, 64')
    a(f's_cbranch_scc1 {Ltop}')
    a('s_waitcnt vmcnt(0)')
    stamp(a, 2, real=True, vt=PT)
    stamp(a, 4, vt=PT)
    cs.dump(PT, 'G')
```

```python
from common import *

XB = (0, 36864, 73728, 110592)
STATL = 147456


def gen_qkv(a, s_idx):
    Lv, Lend = a.newlabel('QKV_V'), a.newlabel('QKV_END')
    a(f's_cmp_ge_u32 s{s_idx}, 32')
    a(f's_cbranch_scc1 {Lv}')
    body(a, s_idx, 0)
    a(f's_branch {Lend}')
    a.label(Lv)
    a.assume(vm=0, lgkm=0)
    body(a, s_idx, 1)
    a.label(Lend)


def body(a, s_idx, isv):
    sH, sK, sSO, sM0, sXO, sOUT, sOUT2, sFLG, sCNT, sTMP, sTMP2 = range(56, 67)
    vWD, vA0, vA1 = 1, 2, 3
    vXD, vOUT, vSR, vT0, vT1, vT2, vT3, vFL = 4, 5, 6, 7, 8, 9, 10, 11
    vXF = [[12 + 4 * p + u for u in range(4)] for p in range(4)]
    ONES = 28
    CS = (32, 48)
    ACC = ((64, 80), (96, 112))
    RING, NR = 128, 6
    MS = 152
    PK = (184, 192)

    def W(m, t):
        r = 256 + 144 * m + 4 * t
        return r if r < 512 else r - 512 + 224

    stamp(a, 0, real=True)
    if isv:
        a(f's_sub_u32 s{sH}, s{s_idx}, 32')
        a(f's_lshl_b32 s{sH}, s{sH}, 1')
    else:
        a(f's_mov_b32 s{sH}, s{s_idx}')
    a(f's_lshl_b32 s{sFLG}, s{sH}, 7')
    a(f's_add_u32 s{sFLG}, s{sFLG}, {FLAGS + 4 * isv}')
    a(f'v_and_b32 v{vFL}, {isv}, v0')
    a(f'v_lshlrev_b32 v{vFL}, 7, v{vFL}')
    a(f'v_bfe_u32 v{vT0}, v0, 1, 3')
    a(f'v_bfe_u32 v{vT1}, v0, 4, 1')
    a(f'v_lshlrev_b32 v{vT1}, 2, v{vT1}')
    a(f'v_xor_b32 v{vT0}, v{vT0}, v{vT1}')
    a(f'v_lshlrev_b32 v{vWD}, 13, v{vT0}')
    a(f'v_lshrrev_b32 v{vT0}, 4, v0')
    a(f'v_lshl_add_u32 v{vWD}, v{vT0}, 5, v{vWD}')
    a(f'v_and_b32 v{vT0}, 1, v0')
    a(f'v_lshl_add_u32 v{vWD}, v{vT0}, 4, v{vWD}')
    a(f's_lshl_b32 s{sSO}, s{S_WAVE}, 16')
    a(f's_lshl_b32 s{sTMP}, s{sH}, 8')
    a(f's_add_u32 s{sSO}, s{sSO}, s{sTMP}')
    a(f's_lshl_b32 s{sM0}, s{S_WAVE}, 11')

    def wdma(m, its):
        sw = S_WV if isv else (S_WQ, S_WK)[m]
        for it in its:
            for l in range(2):
                a(f's_add_u32 m0, s{sM0}, {it * 8192 + l * 1024}')
                a(f's_add_u32 s{sTMP}, s{sSO}, {it * 0x40000 + l * 128 + (256 * m if isv else 0)}')
                a(f'buffer_load_dwordx4 v{vWD}, {srd(sw)}, s{sTMP} offen lds', tag=f'w{m}{it // 9}')

    def conv(m, ts):
        for t in ts:
            off = (t % 16) * 4096
            b = (t // 16) * 2
            a(f'ds_read_b64_tr_b16 {vr(W(m, t), 2)}, v{vAB[b]} offset:{off}')
            a(f'ds_read_b64_tr_b16 {vr(W(m, t) + 2, 2)}, v{vAB[b + 1]} offset:{off}')

    wdma(0, range(18))
    vAB = [vA0, vA1, RING, RING + 1, RING + 2, RING + 3]
    a(f'v_lshrrev_b32 v{vT0}, 5, v0')
    a(f'v_lshlrev_b32 v{vA0}, 11, v{vT0}')
    a(f'v_bfe_u32 v{vT1}, v0, 4, 1')
    a(f'v_mul_u32_u24 v{vT2}, 384, v{vT1}')
    a(f'v_add_u32 v{vA0}, v{vA0}, v{vT2}')
    a(f'v_and_b32 v{vT2}, 15, v0')
    a(f'v_lshl_add_u32 v{vA0}, v{vT2}, 3, v{vA0}')
    a(f's_lshl_b32 s{sTMP}, s{S_WAVE}, 9')
    a(f'v_add_u32 v{vA0}, s{sTMP}, v{vA0}')
    a(f'v_xor_b32 v{vA1}, 128, v{vA0}')
    for j in range(2, 6):
        a(f'v_add_u32 v{vAB[j]}, 0x10000, v{vAB[j - 2]}')
    a(f's_and_b32 s{sTMP}, s{S_WAVE}, 1')
    a(f'v_lshrrev_b32 v{vT0}, 3, v0')
    a(f'v_xor_b32 v{vT0}, s{sTMP}, v{vT0}')
    a(f'v_and_b32 v{vT1}, 7, v0')
    a(f'v_xor_b32 v{vT1}, v{vT1}, v{vT0}')
    a(f's_lshl_b32 s{sTMP}, s{S_WAVE}, 3')
    a(f'v_add_u32 v{vT0}, s{sTMP}, v{vT0}')
    a(f'v_mul_u32_u24 v{vXD}, 1152, v{vT0}')
    a(f'v_lshl_add_u32 v{vXD}, v{vT1}, 4, v{vXD}')
    a(f'v_bfe_u32 v{vT0}, v0, 3, 2')
    a(f'v_and_b32 v{vT1}, 7, v0')
    a(f'v_and_b32 v{vT2}, 1, v{vT0}')
    a(f'v_xor_b32 v{vT2}, v{vT2}, v{vT1}')
    a(f'v_lshlrev_b32 v{vT2}, 7, v{vT2}')
    a(f'v_lshl_add_u32 v{vT2}, v{vT0}, 10, v{vT2}')
    a(f'v_lshrrev_b32 v{vT0}, 5, v0')
    a(f'v_xor_b32 v{vT1}, v{vT1}, v{vT0}')
    for u in range(4):
        a(f'v_xor_b32 v{vT3}, {2 * u}, v{vT1}')
        a(f'v_lshl_add_u32 v{vXF[0][u]}, v{vT3}, 4, v{vT2}')
        for p in (1, 2, 3):
            a(f'v_add_u32 v{vXF[p][u]}, {XB[p]}, v{vXF[0][u]}')
    for j in range(4):
        a(f'v_mov_b32 v{ONES + j}, 0x3f803f80')
    if not isv:
        a(f'v_bfe_u32 v{vT0}, v0, 3, 1')
        a(f'v_bfe_u32 v{vT1}, v0, 4, 1')
        a(f'v_and_b32 v{vT2}, 7, v0')
        a(f'v_lshl_add_u32 v{vT1}, v{vT1}, 3, v{vT2}')
    else:
        a(f'v_bfe_u32 v{vT0}, v0, 2, 1')
        a(f'v_bfe_u32 v{vT1}, v0, 3, 2')
        a(f'v_and_b32 v{vT2}, 3, v0')
        a(f'v_lshl_add_u32 v{vT1}, v{vT1}, 2, v{vT2}')
    a(f'v_lshlrev_b32 v{vOUT}, 10, v{vT0}')
    a(f'v_lshl_add_u32 v{vOUT}, v{vT1}, 4, v{vOUT}')
    a(f'v_lshrrev_b32 v{vT0}, 5, v0')
    a(f'v_lshl_add_u32 v{vOUT}, v{vT0}, 8, v{vOUT}')
    a(f's_lshl_b32 s{sTMP}, s{S_WAVE}, 11')
    a(f'v_add_u32 v{vOUT}, s{sTMP}, v{vOUT}')
    if not isv:
        a(f'v_and_b32 v{vSR}, 31, v0')
        a(f'v_lshlrev_b32 v{vSR}, 2, v{vSR}')
    else:
        a(f'v_lshlrev_b32 v{vSR}, 4, v{vT0}')
    a(f'v_add_u32 v{vSR}, {STATL - 256}, v{vSR}')

    def colsum(m):
        for t in range(36):
            A, B = (vr(W(m, t), 4), vr(ONES, 4)) if not isv else (vr(ONES, 4), vr(W(m, t), 4))
            a(f'v_mfma_f32_32x32x16_bf16 {vr(CS[m], 16)}, {A}, {B}, {"0" if t == 0 else vr(CS[m], 16)}')

    for hf in range(2):
        a.waitfor(f'w0{hf}')
        a('s_barrier')
        stamp(a, 8 + hf, real=True, vt=PK[0])
        conv(0, range(18 * hf, 18 * hf + 18))
        a('s_waitcnt lgkmcnt(0)')
        a('s_barrier')
        wdma(1, range(9 * hf, 9 * hf + 9))
    colsum(0)
    a.waitfor('w10')
    a('s_barrier')
    stamp(a, 10, real=True, vt=PK[0])
    conv(1, range(18))
    a('s_waitcnt lgkmcnt(0)')
    a('s_barrier')

    def xdma(p):
        out = []
        for cb in range(9):
            out.append([f's_add_u32 m0, s{sM0}, {XB[p] + cb * 4096}',
                        f's_add_u32 s{sTMP}, s{sXO}, {cb * 128}',
                        f'buffer_load_dwordx4 v{vXD}, {srd(S_X)}, s{sTMP} offen lds'])
        out.append(f's_add_u32 s{sXO}, s{sXO}, {32 * 1152}')
        return out

    a(f's_lshl_b32 s{sM0}, s{S_WAVE}, 10')
    a(f's_mov_b32 s{sXO}, 0')
    emit(a, xdma(0))
    emit(a, xdma(1))
    a.waitfor('w11')
    a('s_barrier')
    stamp(a, 11, real=True, vt=PK[0])
    conv(1, range(18, 36))
    wait_init(a, vT0, sTMP)
    stamp(a, 12, real=True, vt=PK[0])
    a(f'v_lshlrev_b32 v{vT0}, 4, v0')
    a(f's_lshl_b32 s{sTMP}, s{S_WAVE}, 12')
    a(f's_add_u32 m0, s{sTMP}, {STATL}')
    a(f's_add_u32 s{sTMP}, s{sTMP}, {STAT1}')
    for j in range(4):
        a(f'buffer_load_dwordx4 v{vT0}, {srd(S_WS)}, s{sTMP} offen offset:{1024 * j} sc1 lds')
    a('s_waitcnt lgkmcnt(0)')
    a('s_barrier')
    emit(a, xdma(2))
    colsum(1)
    a(f's_mov_b32 s{sOUT}, 0x10000000')
    a(f's_mov_b32 s{sOUT2}, 0x10000000')
    a(f's_mov_b32 s{sCNT}, -1')
    a(f's_mov_b32 s{sK}, 16')

    def epilogue(p):
        out = []
        if not isv:
            out.append(f'ds_read2_b32 {vr(MS, 2)}, v{vSR} offset0:0 offset1:32')
        else:
            for q in range(4):
                out.append(f'ds_read_b128 {vr(MS + 4 * q, 4)}, v{vSR} offset:{32 * q}')
                out.append(f'ds_read_b128 {vr(MS + 16 + 4 * q, 4)}, v{vSR} offset:{128 + 32 * q}')
        out.append(f'v_add_u32 v{vSR}, 256, v{vSR}')
        for m in range(2):
            acc = ACC[p][m]
            for r in range(0, 16, 2):
                for x in (r, r + 1):
                    if not isv:
                        out.append(f'v_fma_f32 v{acc + x}, -v{MS}, v{CS[m] + x}, v{acc + x}')
                    else:
                        out.append(f'v_fma_f32 v{acc + x}, -v{MS + x}, v{CS[m]}, v{acc + x}')
                for x in (r, r + 1):
                    out.append(f'v_mul_f32 v{acc + x}, v{MS + 1 if not isv else MS + 16 + x}, v{acc + x}')
                out.append(f'v_cvt_pk_bf16_f32 v{PK[m] + r // 2}, v{acc + r}, v{acc + r + 1}')
                if r in (6, 14):
                    c = r // 8
                    out.append(f'buffer_store_dwordx4 {vr(PK[m] + 4 * c, 4)}, v{vOUT}, {srd(S_WS)}, s{(sOUT, sOUT2)[m]} offen offset:{512 * c} sc1')
        return out

    def flag(lag):
        L = a.newlabel('QF')
        a(f's_cmp_lg_u32 s{S_WAVE}, 0')
        a(f's_cbranch_scc1 {L}')
        a(f's_sub_i32 s{sTMP}, s{sCNT}, {lag}')
        a(f's_max_i32 s{sTMP}, s{sTMP}, 0')
        a(f'v_mov_b32 v{vT0}, s{sTMP}')
        a('s_mov_b64 exec, 3')
        a(f'buffer_store_dword v{vT0}, v{vFL}, {srd(S_WS)}, s{sFLG} offen sc1', tag='nc')
        a('s_mov_b64 exec, -1')
        if OPT.get('qst'):
            lstamp(a, sTMP, 0, 200)
        a.label(L)
        a(f's_add_u32 s{sCNT}, s{sCNT}, 1')

    def next_out():
        return [f's_lshl_b32 s{sOUT}, s{sCNT}, 18',
                f's_lshl_b32 s{sTMP2}, s{sH}, 13',
                f's_add_u32 s{sTMP2}, s{sTMP2}, {VB if isv else QB}',
                f's_add_u32 s{sOUT}, s{sOUT}, s{sTMP2}',
                f's_add_u32 s{sOUT2}, s{sOUT}, {8192 if isv else KB - QB}']

    stamp(a, 1, real=True, vt=PK[0])
    stamp(a, 3, vt=PK[0])
    Lloop, Lfirst = a.newlabel('QKV_LOOP'), a.newlabel('QKV_FIRST')
    a('s_waitcnt lgkmcnt(0)')
    a(f's_branch {Lfirst}')
    a.label(Lloop)
    for p4 in range(4):
        p = p4 & 1
        a('s_waitcnt vmcnt(9) lgkmcnt(0)')
        if p4 == 0:
            a.label(Lfirst)
        a.assume(vm=0)
        a('s_barrier')
        flag(0)

        def rd(t):
            return f'ds_read_b128 {vr(RING + 4 * (t % NR), 4)}, v{vXF[p4][t & 3]} offset:{(t >> 2) * 4096}'
        for t in range(NR - 1):
            a(rd(t))
        dm = xdma((p4 + 3) & 3)
        ep = epilogue(p ^ 1) + [next_out()]
        pe = 0
        for t in range(36):
            x = vr(RING + 4 * (t % NR), 4)
            for m in range(2):
                w = vr(W(m, t), 4)
                A, B = (w, x) if not isv else (x, w)
                a(f'v_mfma_f32_32x32x16_bf16 {vr(ACC[p][m], 16)}, {A}, {B}, {"0" if t == 0 else vr(ACC[p][m], 16)}')
                if m == 1 and t + NR - 1 < 36:
                    a(rd(t + NR - 1))
                if m == 0 and t >= 24 and t - 24 < len(dm):
                    emit(a, dm[t - 24])
                tgt = min(len(ep), (len(ep) * (2 * t + m + 1) + 45) // 46)
                while pe < tgt:
                    emit(a, ep[pe])
                    pe += 1
    a(f's_sub_u32 s{sK}, s{sK}, 1')
    a(f's_cmp_lg_u32 s{sK}, 0')
    a(f's_cbranch_scc1 {Lloop}')
    emit(a, epilogue(1))
    a('s_waitcnt vmcnt(0) lgkmcnt(0)')
    a('s_barrier')
    flag(-1)
    stamp(a, 2, real=True, vt=PK[0])
    stamp(a, 4, vt=PK[0])
```

```python
from common import *

REG = 40960
PL = 36864
RS = 208


def gen_wd(a, s_idx, isD):
    NK = 18 if isD else 16
    NST = 3 if isD else 0
    NRES = NK - NST
    SW = S_WD if isD else S_WO
    SRCB, SEG, TO = (ACT, 4 * 576 * 128, 576 * 128) if isD else (OB, 4 * 512 * 128, 512 * 128)
    sTO, sCS, sS, sA, sR, sO, sT, sT2, sBUD, sW36, sPAR = range(56, 67)
    sG = list(range(68, 73))
    sSO, sONE = 73, 74
    vSO = 47 + 4 * NK + 1
    VS, IDX, vPW, vPX, vPR, vRO, vOO, TG = 0, 1, 2, 3, 4, 5, 6, 7
    RES, RF = 8, 12
    TMP = 16
    ACC = [16, 20, 24]
    A = [48 + 4 * t for t in range(NK)]
    nxt = 48 + 4 * NK
    if not isD:
        nxt += 2
    RING = nxt
    if NST:
        nxt += 24
    nfr = 3 * NRES
    nv = nfr - 32
    first = 256 - 8 * nv
    assert first >= nxt, (first, nxt)
    freg = {(t, cb): first + 8 * (3 * t + cb) for t in range(NRES) for cb in range(3)}

    stamp(a, 0, real=True)
    a(f's_mul_i32 s{sTO}, s{s_idx}, 43')
    a(f's_lshr_b32 s{sTO}, s{sTO}, 9')
    a(f's_mul_i32 s{sT}, s{sTO}, 12')
    a(f's_sub_u32 s{sCS}, s{s_idx}, s{sT}')
    a(f's_mul_i32 s{sW36}, s{S_WAVE}, {REG}')
    a(f's_mov_b32 s{sBUD}, {BUDGET}')
    a(f's_mov_b32 s{sS}, 0')
    a(f's_mul_i32 s{sT}, s{sCS}, {6 * 512}')
    a(f's_lshl_b32 s{sT2}, s{sTO}, 7')
    a(f's_add_u32 s{sT}, s{sT}, s{sT2}')
    a(f's_add_u32 s{sT}, s{sT}, {HB}')
    a(f's_mul_i32 s{sT2}, s{sTO}, {8 * 1152}')
    a(f's_mul_i32 s{sA}, s{sCS}, 96')
    a(f's_add_u32 s{sT2}, s{sT2}, s{sA}')
    a(f's_mov_b32 s{sR if isD else sO}, s{sT}')
    a(f's_mov_b32 s{sO if isD else sR}, s{sT2}')
    a(f's_mul_i32 s{sA}, s{sTO}, {TO}')
    a(f's_mul_i32 s{sT}, s{S_WAVE}, {NK * 1024}')
    a(f's_add_u32 s{sA}, s{sA}, s{sT}')
    a(f's_add_u32 s{sA}, s{sA}, {SRCB}')
    vL, t0, t1, t2 = 16, 17, 18, 19
    vD = [20, 21, 22]
    vT = 23
    a(f'v_mov_b32 v{vL}, v0')
    a(f'v_lshrrev_b32 v{t0}, 3, v{vL}')
    a(f'v_min_u32 v{t0}, 5, v{t0}')
    a(f'v_and_b32 v{t1}, 7, v{vL}')
    vH, vX = (vRO, vOO) if isD else (vOO, vRO)
    a(f'v_lshlrev_b32 v{vH}, 9, v{t0}')
    a(f'v_lshl_add_u32 v{vH}, v{t1}, 4, v{vH}')
    a(f'v_mul_u32_u24 v{vX}, 1152, v{t1}')
    a(f'v_lshl_add_u32 v{vX}, v{t0}, 4, v{vX}')
    a(f'v_mul_u32_u24 v{vPR}, {RS}, v{t1}')
    a(f'v_lshl_add_u32 v{vPR}, v{t0}, 5, v{vPR}')
    a(f'v_add_u32 v{vPR}, {PL}, v{vPR}')
    if not isD:
        a(f'v_lshrrev_b32 v{vSO}, 5, v{vL}')
        a(f'v_lshlrev_b32 v{vSO}, 9, v{vSO}')
        a(f'v_lshl_add_u32 v{vSO}, v{t1}, 4, v{vSO}')
        a(f's_lshr_b32 s{sT}, s{sCS}, 2')
        a(f's_lshl_b32 s{sSO}, s{sT}, 10')
        a(f's_and_b32 s{sT}, s{sCS}, 3')
        a(f's_lshl_b32 s{sT}, s{sT}, 2')
        a(f's_add_u32 s{sSO}, s{sSO}, s{sT}')
        a(f's_lshl_b32 s{sT}, s{sTO}, 7')
        a(f's_add_u32 s{sSO}, s{sSO}, s{sT}')
        a(f's_add_u32 s{sSO}, s{sSO}, {HB + 36864}')
        a(f's_mov_b32 s{sONE}, 0x3f803f80')
    for i in range(3):
        a(f'v_add_u32 v{t0}, {64 * i}, v{vL}')
        a(f'v_mul_u32_u24 v{t1}, 43691, v{t0}')
        a(f'v_lshrrev_b32 v{t1}, 18, v{t1}')
        a(f'v_mul_u32_u24 v{t2}, 6, v{t1}')
        a(f'v_sub_u32 v{t2}, v{t0}, v{t2}')
        a(f'v_mul_u32_u24 v{vD[i]}, 1152, v{t1}')
        a(f'v_lshl_add_u32 v{vD[i]}, v{t2}, 4, v{vD[i]}')

    def dma(n):
        a(f's_mul_i32 s{sT}, s{S_WAVE}, {NK * 64 * 1152}')
        a(f's_mul_i32 s{sT2}, s{sCS}, 96')
        a(f's_add_u32 s{sT}, s{sT}, s{sT2}')
        for i in range(6):
            a(f's_add_u32 m0, s{sW36}, {slot(n) * 6144 + i * 1024}')
            a(f's_add_u32 s{sT2}, s{sT}, {(64 * n + 32 * (i // 3)) * 1152}')
            a(f'buffer_load_dwordx4 v{vD[i % 3]}, {srd(SW)}, s{sT2} offen lds', tag=f'w{n}')

    def slot(n):
        return n % 6

    if isD and OPT.get('dh', '0') == '1':
        a(f'v_lshlrev_b32 v{t0}, 7, v{vL}')
        a(f's_lshl_b32 s{sT}, s{s_idx}, 2')
        a(f's_add_u32 s{sT}, s{sT}, s{S_WAVE}')
        a(f's_mul_i32 s{sT}, s{sT}, {3 * 8192}')
        for i in range(3):
            a(f'buffer_load_dword v{t1}, v{t0}, {srd(S_WO)}, s{sT} offen', tag='nc')
            a(f's_add_u32 s{sT}, s{sT}, 8192')
    if 'WD'[isD] in OPT.get('late', 'GD'):
        wait_init(a, t0, sT)
    for n in range(6):
        dma(n)
    a(f'v_lshrrev_b32 v{t0}, 4, v{vL}')
    a(f'v_lshlrev_b32 v{t0}, 3, v{t0}')
    a(f'v_bfe_u32 v{t1}, v{vL}, 3, 1')
    a(f'v_lshl_add_u32 v{t0}, v{t1}, 2, v{t0}')
    a(f'v_bfe_u32 v{t1}, v{vL}, 2, 1')
    a(f'v_add_u32 v{t0}, v{t0}, v{t1}')
    a(f'v_mul_u32_u24 v{vT}, 96, v{t0}')
    a(f'v_and_b32 v{t1}, 3, v{vL}')
    a(f'v_lshl_add_u32 v{vT}, v{t1}, 3, v{vT}')
    a(f'v_add_u32 v{vT}, s{sW36}, v{vT}')
    a(f'v_bfe_u32 v{t0}, v{vL}, 4, 1')
    a(f'v_mul_u32_u24 v{t0}, {4 * RS}, v{t0}')
    a(f'v_and_b32 v{t1}, 15, v{vL}')
    a(f'v_lshl_add_u32 v{t0}, v{t1}, 2, v{t0}')
    a(f'v_add_u32 v{t0}, s{sW36}, v{t0}')
    a(f'v_lshrrev_b32 v{t1}, 5, v{vL}')
    a(f'v_lshl_add_u32 v{vPW}, v{t1}, 6, v{t0}')
    a(f'v_add_u32 v{vPW}, {PL}, v{vPW}')
    a(f'v_mul_u32_u24 v{t1}, {RS}, v{t1}')
    a(f'v_add_u32 v{vPX}, v{t0}, v{t1}')
    a(f'v_add_u32 v{vPX}, {PL + 128}, v{vPX}')
    a(f's_mov_b32 s{sT}, 0xff00ff00')
    a(f's_mov_b32 s{sT + 1}, 0xff00ff00')
    assert sT % 2 == 0
    a(f'v_mov_b32 v{IDX}, 0x4444')
    a(f'v_mov_b32 v{t0}, 0xeeee')
    a(f'v_cndmask_b32 v{IDX}, v{IDX}, v{t0}, s[{sT}:{sT + 1}]')
    a(f'v_lshlrev_b32 v{VS}, 4, v{vL}')
    for n in range(NK):
        a.waitfor(f'w{n}')
        for cb in range(3):
            dst = freg[(n, cb)] if n < NRES else RING + 8 * cb
            for c in range(2):
                for half in range(2):
                    off = slot(n) * 6144 + (32 * c + 2 * half) * 96 + cb * 32
                    a(f'ds_read_b64_tr_b16 {vr(dst + 4 * c + 2 * half, 2)}, v{vT} offset:{off}', tag=f'c{n}')
        if n >= NRES:
            a(f'v_add_u32 v{t0}, s{sW36}, v{VS}')
            for q in range(6):
                a(f'ds_write_b128 v{t0}, {vr(RING + 4 * q, 4)} offset:{slot(n) * 6144 + q * 1024}')
        if n + 6 < NK:
            a.waitfor(f'c{n}')
            dma(n + 6)
    a('s_waitcnt lgkmcnt(0)')
    stamp(a, 1, real=True, vt=t0 + 1)
    wait_init(a, t0, sT)

    def issue():
        for g in range((NK + 3) // 4):
            a(f's_add_u32 s{sG[g]}, s{sA}, {g * 4096}')
        if isD:
            a(f'buffer_load_dwordx4 {vr(RES, 4)}, v{vRO}, {srd(S_WS)}, s{sR} offen sc1')
        else:
            a(f'buffer_load_dwordx4 {vr(RES, 4)}, v{vRO}, {srd(S_X)}, s{sR} offen')
        for t in order:
            a(f'buffer_load_dwordx4 {vr(A[t], 4)}, v{VS}, {srd(S_WS)}, s{sG[t // 4]} offen offset:{(t & 3) * 1024} sc1')

    def ringrd(n):
        return [f'ds_read_b128 {vr(RING + 4 * q, 4)}, v{vLA} offset:{slot(n) * 6144 + q * 1024}' for q in range(6)]

    vLA = 46
    if NST:
        order = [NRES] + list(range(0, 7)) + [NRES + 1] + list(range(7, 15)) + [NRES + 2]
    else:
        order = list(range(NK))
    Lissue, Lround, Lok = a.newlabel('WI'), a.newlabel('WR'), a.newlabel('WK')
    a(f's_mov_b32 s{sPAR}, 0')
    a.label(Lissue)
    a.assume(vm=0, lgkm=0)
    issue()
    a.label(Lround)
    if NST:
        a(f'v_add_u32 v{vLA}, s{sW36}, v{VS}')
        emit(a, ringrd(NRES))
    for r in range(0, 12, 2):
        a(f'v_mov_b64 {vr(ACC[0] + r, 2)}, 0')
    if isD:
        a(f'v_max3_u32 v{TG}, v{RES}, v{RES + 1}, v{RES + 2}')
        a(f'v_max_u32 v{TG}, v{RES + 3}, v{TG}')
    else:
        a(f'v_mov_b32 v{TG}, 0')
    for t in order:
        for cb in range(3):
            B = freg[(t, cb)] if t < NRES else RING + 8 * cb
            a(f'v_smfmac_f32_16x16x64_bf16 {vr(ACC[cb], 4)}, {vr(A[t], 4)}, {vr(B, 8)}, v{IDX}')
            if cb < 2:
                a(f'v_max3_u32 v{TG}, v{A[t] + 2 * cb}, v{A[t] + 2 * cb + 1}, v{TG}')
        if t >= NRES and t + 1 < NK:
            emit(a, ringrd(t + 1))
    a(f'v_cmp_eq_u32 vcc, -1, v{TG}')
    a(f's_sub_i32 s{sBUD}, s{sBUD}, 1')
    a(f's_cmp_lt_i32 s{sBUD}, 0')
    a(f's_cbranch_scc1 {Lok}')
    a(f's_cbranch_vccnz {Lissue}')
    a.label(Lok)
    lstamp(a, sS, 0, 30)
    a(f'v_mov_b64 {vr(RF, 2)}, {vr(RES, 2)}')
    a(f'v_mov_b64 {vr(RF + 2, 2)}, {vr(RES + 2, 2)}')
    a(f's_add_u32 s{sA}, s{sA}, {SEG}')
    a(f's_add_u32 s{sR}, s{sR}, {HSEG if isD else 36864}')
    issue()
    b0, b1, b2 = ACC
    for r in range(4):
        a(f'v_permlane32_swap_b32 v{b0 + r}, v{b1 + r}')
    a(f'v_permlane32_swap_b32 v{b2}, v{b2 + 1}')
    a(f'v_permlane32_swap_b32 v{b2 + 2}, v{b2 + 3}')
    a(f'v_add_u32 v28, s{sPAR}, v{vPW}')
    a(f'v_add_u32 v29, s{sPAR}, v{vPX}')
    for r in range(4):
        a(f'v_add_f32 v{b0 + r}, v{b0 + r}, v{b1 + r}')
    a(f'v_add_f32 v{b2}, v{b2}, v{b2 + 1}')
    a(f'v_add_f32 v{b2 + 2}, v{b2 + 2}, v{b2 + 3}')
    q = RS // 4
    a(f'ds_write2_b32 v28, v{b0}, v{b0 + 1} offset0:0 offset1:{q}', tag='pw')
    a(f'ds_write2_b32 v28, v{b0 + 2}, v{b0 + 3} offset0:{2 * q} offset1:{3 * q}', tag='pw')
    a(f'ds_write2_b32 v29, v{b2}, v{b2 + 2} offset0:0 offset1:{2 * q}', tag='pw')
    a.waitfor('pw')
    a('s_barrier')
    Lnr = a.newlabel('WN')
    a(f's_cmp_lg_u32 s{S_WAVE}, 0')
    a(f's_cbranch_scc1 {Lnr}')
    a(f'v_add_u32 v{TG}, s{sPAR}, v{vPR}')
    a(f'ds_read_b128 {vr(16, 4)}, v{TG}')
    a(f'ds_read_b128 {vr(20, 4)}, v{TG} offset:16')
    a(f'ds_read_b128 {vr(24, 4)}, v{TG} offset:{REG}')
    a(f'ds_read_b128 {vr(28, 4)}, v{TG} offset:{REG + 16}')
    a(f'v_add_u32 v{TG}, {2 * REG}, v{TG}')
    a(f'ds_read_b128 {vr(32, 4)}, v{TG}')
    a(f'ds_read_b128 {vr(36, 4)}, v{TG} offset:16')
    a(f'ds_read_b128 {vr(40, 4)}, v{TG} offset:{REG}')
    a(f'ds_read_b128 {vr(44, 4)}, v{TG} offset:{REG + 16}')
    for j in range(0, 8, 2):
        a(f'v_pk_add_f32 {vr(16 + j, 2)}, {vr(16 + j, 2)}, {vr(24 + j, 2)}')
    for j in range(4):
        a(f'v_lshlrev_b32 v{24 + 2 * j}, 16, v{RF + j}')
        a(f'v_and_b32 v{25 + 2 * j}, 0xffff0000, v{RF + j}')
    for j in range(0, 8, 2):
        a(f'v_pk_add_f32 {vr(16 + j, 2)}, {vr(16 + j, 2)}, {vr(24 + j, 2)}')
    for j in range(0, 8, 2):
        a(f'v_pk_add_f32 {vr(32 + j, 2)}, {vr(32 + j, 2)}, {vr(40 + j, 2)}')
    for j in range(0, 8, 2):
        a(f'v_pk_add_f32 {vr(16 + j, 2)}, {vr(16 + j, 2)}, {vr(32 + j, 2)}')
        a(f'v_cvt_pk_bf16_f32 v{RF + j // 2}, v{16 + j}, v{17 + j}')
    if isD:
        a(f'buffer_store_dwordx4 {vr(RF, 4)}, v{vOO}, {srd(S_OUT)}, s{sO} offen', tag='nc')
    else:
        a.raw(f'  s_waitcnt vmcnt({NK + 1})')
        a(f'buffer_store_dwordx4 {vr(RF, 4)}, v{vOO}, {srd(S_WS)}, s{sO} offen sc1', tag='nc')
        a('v_mov_b64 v[32:33], 0')
        a('s_mov_b32 exec_hi, 0xffff')
        for j in range(4):
            a(f'v_dot2_f32_bf16 v32, v{RF + j}, s{sONE}, v32')
            a(f'v_dot2_f32_bf16 v33, v{RF + j}, v{RF + j}, v33')
        a('s_mov_b32 exec_hi, -1')
        a('v_mov_b64 v[24:25], -1')
        a('v_mov_b64 v[26:27], -1')
        a('v_permlane32_swap_b32 v32, v33')
        a('v_add_f32 v32, v32, v33')
        a(f's_add_u32 s{sT}, s{sO}, {2 * HSEG}')
        a('v_mov_b32 v33, v32')
        a('v_permlane16_swap_b32 v32, v33')
        a('v_add_f32 v32, v32, v33')
        a(f's_add_u32 s{sT2}, s{sSO}, {2 * HSEG}')
        a('v_add_f32_dpp v32, v32, v32 row_ror:8 row_mask:0xf bank_mask:0xf')
        a(f'buffer_store_dword v32, v{vSO}, {srd(S_WS)}, s{sSO} offen sc1', tag='nc')
        a(f'buffer_store_dwordx4 {vr(24, 4)}, v{vOO}, {srd(S_WS)}, s{sT} offen sc1', tag='nc')
        a(f'buffer_store_dword v24, v{vSO}, {srd(S_WS)}, s{sT2} offen sc1', tag='nc')
        a(f's_add_u32 s{sSO}, s{sSO}, {HSEG}')
    a.label(Lnr)
    lstamp(a, sS, 1, 30)
    a(f's_add_u32 s{sO}, s{sO}, {36864 if isD else HSEG}')
    a(f's_xor_b32 s{sPAR}, s{sPAR}, 2048')
    a(f's_add_u32 s{sS}, s{sS}, 1')
    a(f's_cmp_lt_u32 s{sS}, 64')
    a(f's_cbranch_scc1 {Lround}')
    a('s_waitcnt vmcnt(0)')
    stamp(a, 2, real=True, vt=16)
```

```python
import sys
sys.path.insert(0, 'gen')
from common import *

V = {}
V['soff64'] = (32, 0, 0, 'a', 4)
V['soff1'] = (32, 0, 0, 'b', 4)
V['soob64'] = (32, 0, 0, 'c', 4)
V['s4_16'] = (32, 0, 0, 'd', 4)
V['l1_32'] = (32, 0, 0, 'e', 4)
V['l1_64'] = (32, 0, 0, 'f', 4)
V['l4_oob'] = (32, 0, 0, 'g', 4)
V['l4_lds'] = (32, 0, 0, 'h', 4)
V['l4off_lds1'] = (32, 0, 0, 'i', 4)
N = 200


def gen(a, nm):
    cp, cs, m2, kind, ncu = V[nm]
    a('s_and_b32 s3, s2, 7')
    a('s_cmp_lg_u32 s3, 0')
    a('s_cbranch_scc1 UBX')
    a(f's_lshr_b32 s{S_ROLE}, s2, 3')
    a(f's_cmp_ge_u32 s{S_ROLE}, {ncu}')
    a('s_cbranch_scc1 UBX')
    a('v_lshlrev_b32 v1, 4, v0')
    a('v_lshlrev_b32 v2, 2, v0')
    a(f's_and_b32 s60, s{S_ROLE}, {cp - 1}')
    a(f's_mul_i32 s60, s60, {cs}')
    a(f's_add_u32 s61, s60, 8192')
    a(f's_lshl_b32 s62, s{S_WAVE}, 11')
    a('s_add_u32 s60, s60, s62')
    a(f's_lshl_b32 s62, s{S_WAVE}, 8')
    a('s_add_u32 s62, s62, s61')
    if m2 == 3:
        a('v_lshrrev_b32 v3, 5, v0')
        a('v_lshl_add_u32 v2, v3, 7, v2')
        a(f's_lshl_b32 s62, s{S_WAVE}, 9')
        a('s_add_u32 s62, s62, s61')
    if kind in 'pq':
        a(f's_cmp_ge_u32 s{S_WAVE}, 2')
        a('s_cbranch_scc1 UBX')
        a('v_lshrrev_b32 v3, 4, v0')
        a('v_and_b32 v4, 15, v0')
        a('v_lshlrev_b32 v4, 3, v4')
        a('v_lshl_add_u32 v1, v3, 13, v4')
        a(f's_lshr_b32 s60, s{S_ROLE}, 3')
        a('s_lshl_b32 s60, s60, 1')
        a(f's_add_u32 s60, s60, s{S_WAVE}')
        a('s_lshl_b32 s60, s60, 15')
        a(f's_and_b32 s61, s{S_ROLE}, 7')
        a('s_lshl_b32 s61, s61, 7')
        a('s_add_u32 s60, s60, s61')
        a('s_add_u32 s61, s60, 4096')
        if kind == 'q':
            a('v_lshrrev_b32 v3, 3, v0')
            a('v_and_b32 v4, 7, v0')
            a('v_lshlrev_b32 v4, 4, v4')
            a('v_lshl_add_u32 v1, v3, 10, v4')
            for e in range(4):
                a(f's_add_u32 s{64 + e}, s60, {8192 * e}')
    a('s_mov_b32 s70, 0x10000000')
    a('v_lshlrev_b32 v20, 7, v0')
    a(f's_lshl_b32 m0, s{S_WAVE}, 12')
    if kind in 'bi':
        a('s_mov_b64 exec, 1')
    if kind == 'd':
        a('s_mov_b64 exec, 0xffff')
    if kind == 'e':
        a('s_mov_b32 exec_hi, 0')
    if kind in 'stabcdefghi':
        a('v_lshlrev_b32 v3, 3, v0')
        a(f's_lshl_b32 s60, s{S_WAVE}, 16')
        a(f's_lshl_b32 s61, s{S_ROLE}, 10')
        a('s_add_u32 s60, s60, s61')
        a('s_add_u32 s61, s60, 32768')
    for rep in range(2):
        a('s_mov_b32 s63, 0')
        a('s_memtime s[90:91]')
        a('s_waitcnt lgkmcnt(0)')
        a.label(f'LP{rep}')
        n = 0
        if kind == 'x4':
            a(f'buffer_load_dwordx4 v[4:7], v1, {srd(S_WS)}, s60 offen sc1', tag='nc')
            a(f'buffer_load_dwordx4 v[8:11], v1, {srd(S_WS)}, s60 offen offset:1024 sc1', tag='nc')
            n = 2
            if m2 == 1:
                a(f'buffer_load_dwordx4 v[12:15], v1, {srd(S_WS)}, s61 offen sc1', tag='nc')
            if m2 >= 2:
                a(f'buffer_load_dword v12, v2, {srd(S_WS)}, s62 offen sc1', tag='nc')
            n += m2 > 0
        if kind == 'p':
            for e in range(8):
                a(f'buffer_load_dwordx2 v[{4 + 2 * e}:{5 + 2 * e}], v1, {srd(S_WS)}, s{60 + (e >> 2)} offen offset:{(e & 3) * 1024} sc1', tag='nc')
            n = 8
        if kind == 'q':
            for e in range(4):
                a(f'buffer_load_dwordx4 v[{4 + 4 * e}:{7 + 4 * e}], v1, {srd(S_WS)}, s{64 + e} offen sc1', tag='nc')
            n = 4
        if kind in 'abcdefghi':
            for e in range(4):
                a({'a': f'buffer_store_dword v4, off, {srd(S_WS)}, s60', 'b': f'buffer_store_dword v4, off, {srd(S_WS)}, s60',
                   'c': f'buffer_store_dword v4, off, {srd(S_WS)}, s70', 'd': f'buffer_store_dwordx4 v[4:7], v1, {srd(S_WS)}, s60 offen',
                   'e': f'buffer_load_dword v20, {srd(S_WS)}, s60 offen sc1 lds', 'f': f'buffer_load_dword v20, {srd(S_WS)}, s60 offen sc1 lds',
                   'g': f'buffer_load_dwordx4 v[4:7], v1, {srd(S_WS)}, s70 offen sc1', 'h': f'buffer_load_dwordx4 off, {srd(S_WS)}, s60 sc1 lds',
                   'i': f'buffer_load_dwordx4 off, {srd(S_WS)}, s60 sc1 lds'}[kind], tag='nc')
            n = 4
        if kind == 's':
            for e in range(4):
                a(f'buffer_store_dwordx2 v[4:5], v3, {srd(S_WS)}, s{60 + (e >> 1)} offen offset:{(e & 1) * 512}', tag='nc')
            n = 4
        if kind == 't':
            for e in range(2):
                a(f'buffer_store_dwordx4 v[4:7], v1, {srd(S_WS)}, s{60 + e} offen', tag='nc')
            n = 2
        a.raw(f'  s_waitcnt vmcnt({3 * n})')
        a('s_add_u32 s63, s63, 1')
        a(f's_cmp_lt_u32 s63, {N}')
        a(f's_cbranch_scc1 LP{rep}')
        a.raw('  s_waitcnt vmcnt(0)')
    a('s_mov_b64 exec, -1')
    a('s_memtime s[92:93]')
    a('s_waitcnt lgkmcnt(0)')
    a('s_sub_u32 s92, s92, s90')
    a('v_mov_b32 v5, s92')
    a(f's_lshl_b32 s61, s{S_ROLE}, 2')
    a(f's_add_u32 s61, s61, s{S_WAVE}')
    a('s_lshl_b32 s61, s61, 2')
    a(f's_add_u32 s61, s61, {DIAG}')
    a(f'buffer_store_dword v5, off, {srd(S_WS)}, s61')
    a.label('UBX')


if sys.argv[1] == 'build':
    from build import wrap, assemble
    for nm in V:
        k = wrap('ub_kernel', 256, lambda a: gen(a, nm))
        open(f'ub7_{nm}.s', 'w').write(file_text([('ub_kernel', 256, 163840)], [k]))
        assemble(f'ub7_{nm}.s')
    print(', '.join(f'"gen/out/ub7_{nm}.s", "gen/out/ub7_{nm}.co"' for nm in V))
else:
    from harness import *
    c = Ctx()
    for nm in V:
        c.memset(c.ws, 0, DIAG, 4096)
        c.load(f'ub7_{nm}.s')
        c.timed(2, flush=False)
        d = c.get(c.ws, DIAG, np.uint32, (32, 4)) / N
        d = d[d > 0]
        print(nm, 'cycles per round', d.min(), np.median(d), d.max())
```
